```python
import torch

def _softmax(x, axis=-1):
    return torch.softmax(x, dim=axis)

def _gelu(x):
    return torch.nn.functional.gelu(x, approximate='tanh')

def _silu(x):
    return torch.nn.functional.silu(x)

def _sigmoid(x):
    return torch.sigmoid(x)

def _layernorm(x, axis=-1, eps=1e-05):
    m = x.mean(dim=axis, keepdim=True)
    v = x.var(dim=axis, keepdim=True, unbiased=False)
    return (x - m) / torch.sqrt(v + eps)

def _scatter_add(tgt, idx, src, axis=0):
    return tgt.clone().index_add_(axis, idx, src)

def _segment_sum(src, seg, n):
    out = torch.zeros((n,) + src.shape[1:], dtype=src.dtype)
    return out.index_add_(0, seg, src)

def _pad(x, pw):
    flat = tuple((v for pair in reversed(pw) for v in pair))
    return torch.nn.functional.pad(x, flat)
kernel_name = 'adaLN_cond__gqa_block_cached__dense_activation_relu__decode'

def setup_inputs():

    _w = lambda a: (lambda t: t.to(torch.bfloat16) if t.is_floating_point() else t)(torch.as_tensor(a))

    def _A_setup():
        B, Sq, D = (4, 1, 448)
        Hq, Hkv, Sk, Dh = (16, 8, 4096, 256)
        assert Hq % Hkv == 0, (Hq, Hkv)
        return {'x': _w((lambda *s: torch.randn(*s, dtype=torch.bfloat16) * 0.05)(B, Sq, D)), 'k_cache': _w((lambda *s: torch.randn(*s, dtype=torch.bfloat16) * 3.2)(B, Hkv, Sk, Dh)), 'v_cache': _w((lambda *s: torch.randn(*s, dtype=torch.bfloat16) * 0.4)(B, Hkv, Sk, Dh)), 'wq': _w((lambda *s: torch.randn(*s, dtype=torch.bfloat16) * 3.2)(D, Hq * Dh) * D ** (-0.5)), 'wo': _w((lambda *s: torch.randn(*s, dtype=torch.bfloat16) * 0.4)(Hq * Dh, D) * (Hq * Dh) ** (-0.5))}
    _A_in = _A_setup()

    def _B_setup():
        B, S, D, Dff = (4, 1, 448, 1792)
        return {'x': _w((lambda *s: torch.randn(*s, dtype=torch.bfloat16) * 0.05)(B, S, D)), 'w1': _w((lambda *s: torch.randn(*s, dtype=torch.bfloat16) * 0.05)(D, Dff)), 'w2': _w((lambda *s: torch.randn(*s, dtype=torch.bfloat16) * 0.05)(Dff, D))}
    _B_in = _B_setup()
    return {'A_x': _A_in['x'], 'A_k_cache': _A_in['k_cache'], 'A_v_cache': _A_in['v_cache'], 'A_wq': _A_in['wq'], 'A_wo': _A_in['wo'], 'B_x': _B_in['x'], 'B_w1': _B_in['w1'], 'B_w2': _B_in['w2'], 'c': _w((lambda *s: torch.randn(*s, dtype=torch.bfloat16) * 0.2)(4, 448) * 8.0), 'w_mod': _w((lambda *s: torch.randn(*s, dtype=torch.bfloat16) * 0.2)(448, 6 * 448) * 448 ** (-0.5) * 8.0)}

def reference(A_x, A_k_cache, A_v_cache, A_wq, A_wo, B_x, B_w1, B_w2, c, w_mod):

    def _A_ref(x, k_cache, v_cache, wq, wo):
        B, Sq, D = x.shape
        Hq, Dh = (16, 256)
        Hkv = k_cache.shape[1]
        rep = Hq // Hkv
        q = (lambda x, *d: x.permute(*d))((x @ wq).reshape(B, Sq, Hq, Dh), 0, 2, 1, 3)
        k = (lambda x, n, axis: torch.repeat_interleave(x, n, dim=axis))(k_cache, rep, axis=1)
        v = (lambda x, n, axis: torch.repeat_interleave(x, n, dim=axis))(v_cache, rep, axis=1)
        scores = torch.einsum('bhqd,bhkd->bhqk', q, k) * Dh ** (-0.5)
        p = _softmax(scores, axis=-1)
        o = torch.einsum('bhqk,bhkd->bhqd', p, v)
        return (lambda x, *d: x.permute(*d))(o, 0, 2, 1, 3).reshape(B, Sq, Hq * Dh) @ wo

    def _B_ref(x, w1, w2):
        h = torch.einsum('bsd,df->bsf', x, w1)
        zero = torch.zeros_like(h)
        h = torch.maximum(h, zero)
        return torch.einsum('bsf,fd->bsd', h, w2)
    x = A_x
    mod = (_silu(c) @ w_mod).reshape(c.shape[0], 6, 1, -1)
    sa, ca, ga, sb, cb, gb = (mod[:, 0].clone(), mod[:, 1].clone(), mod[:, 2].clone(), mod[:, 3].clone(), mod[:, 4].clone(), mod[:, 5].clone())
    h = _layernorm(x, axis=-1) * (1 + ca) + sa
    x = x + ga * _A_ref(h, A_k_cache, A_v_cache, A_wq, A_wo)
    h = _layernorm(x, axis=-1) * (1 + cb) + sb
    x = x + gb * _B_ref(h, B_w1, B_w2)
    return x
```

```python
import re

TRANS = ("v_exp_f32", "v_log_f32", "v_rcp_f32", "v_rsq_f32", "v_sqrt_f32", "v_sin_f32", "v_cos_f32")


def regs_of(tok):
    tok = tok.strip()
    tok = tok.lstrip("-")
    m = re.fullmatch(r"abs\((.*)\)", tok)
    if m:
        tok = m.group(1)
    m = re.fullmatch(r"\|(.*)\|", tok)
    if m:
        tok = m.group(1)
    if tok == "vcc":
        return {("s", "vcc_lo"), ("s", "vcc_hi")}
    if tok in ("vcc_lo", "vcc_hi"):
        return {("s", tok)}
    if tok == "exec":
        return {("s", "exec")}
    if tok == "m0":
        return {("s", "m0")}
    m = re.fullmatch(r"([vs])(\d+)", tok)
    if m:
        return {(m.group(1), int(m.group(2)))}
    m = re.fullmatch(r"([vs])\[(\d+):(\d+)\]", tok)
    if m:
        return {(m.group(1), k) for k in range(int(m.group(2)), int(m.group(3)) + 1)}
    return set()


class Ins:
    def __init__(self, text):
        self.text = text
        t = text.split(";")[0].strip()
        self.label = t.endswith(":")
        self.directive = t.startswith(".")
        self.kind = None
        self.w = set(); self.r = set()
        self.dpp = False; self.trans = False; self.perm = False; self.rl = False
        self.passes = 0; self.srcC = set(); self.srcAB = set()
        self.states = 1; self.lds = False; self.wide_store = set()
        if self.label or self.directive or not t:
            self.states = 0
            return
        parts = t.split(None, 1)
        mn = parts[0]; self.mn = mn
        rest = parts[1] if len(parts) > 1 else ""
        ops = []
        depth = 0; cur = ""
        for chh in rest:
            if chh == "[": depth += 1
            if chh == "]": depth -= 1
            if chh == "," and depth == 0:
                ops.append(cur.strip()); cur = ""
            else:
                cur += chh
        if cur.strip(): ops.append(cur.strip())
        mods = ""
        if ops:
            sp = ops[-1].split(None, 1)
            ops[-1] = sp[0]
            mods = sp[1] if len(sp) > 1 else ""
        self.ops = ops; self.mods = mods
        R = [regs_of(o) for o in ops]
        if mn == "s_nop":
            self.kind = "nop"; self.states = int(ops[0], 0) + 1
        elif mn.startswith("v_mfma"):
            self.kind = "mfma"
            self.passes = 8 if "32x32" in mn else 4
            self.w = R[0]; self.srcAB = R[1] | R[2]; self.srcC = R[3]; self.r = self.srcAB | self.srcC
        elif mn.startswith("v_"):
            self.kind = "valu"
            self.dpp = mn.endswith("_dpp")
            self.trans = any(mn.startswith(x) for x in TRANS)
            self.perm = mn.startswith("v_permlane")
            self.rl = mn.startswith("v_readfirstlane") or mn.startswith("v_readlane")
            if self.perm:
                self.w = R[0] | R[1]; self.r = R[0] | R[1]
            else:
                self.w = set(R[0])
                for x in R[1:]: self.r |= x
                if self.dpp or mn.startswith("v_fmac") or mn.startswith("v_writelane"):
                    self.r |= R[0]
                if mn.startswith("v_add_co") or mn.startswith("v_addc_co") or mn.startswith("v_sub_co"):
                    self.w |= R[1]
        elif mn.startswith("buffer_") or mn.startswith("global_"):
            self.kind = "vmem"
            self.lds = " lds" in (" " + mods) or "_lds_" in mn
            isload = "_load" in mn
            if mn.startswith("buffer_"):
                if isload and not self.lds:
                    self.w = R[0]
                    for x in R[1:]: self.r |= x
                else:
                    for x in R: self.r |= x
                    if ("dwordx4" in mn or "dwordx3" in mn) and not isload:
                        self.wide_store = R[0]
            else:
                if isload and not self.lds:
                    self.w = R[0]
                    for x in R[1:]: self.r |= x
                elif "atomic" in mn and "sc0" in mods:
                    self.w = R[0]
                    for x in R[1:]: self.r |= x
                else:
                    for x in R: self.r |= x
                    if ("dwordx4" in mn or "dwordx3" in mn) and not isload:
                        self.wide_store = R[1]
        elif mn.startswith("ds_"):
            self.kind = "ds"
            if mn.startswith("ds_read") or mn.startswith("ds_bpermute") or mn.startswith("ds_permute") or mn.startswith("ds_swizzle"):
                self.w = R[0]
                for x in R[1:]: self.r |= x
            else:
                for x in R: self.r |= x
        elif mn.startswith("s_"):
            self.kind = "salu"
            if mn.startswith("s_cmp") or mn.startswith("s_cbranch") or mn in ("s_branch", "s_waitcnt", "s_barrier", "s_endpgm", "s_setprio", "s_sleep"):
                for x in R: self.r |= x
            else:
                if R: self.w = set(R[0])
                for x in R[1:]: self.r |= x
        else:
            raise ValueError("unknown instruction: " + text)


def need(p, c):
    n = 0
    vw = {x for x in p.w if x[0] == "v"}
    sw = {x for x in p.w if x[0] == "s"}
    if p.kind == "valu":
        if c.kind == "valu":
            if c.dpp and vw & c.r: n = max(n, 2)
            if c.perm and vw & c.r: n = max(n, 2)
            if c.rl and vw & c.r: n = max(n, 1)
            if p.trans and vw & c.r: n = max(n, 1)
            if sw & c.r: n = max(n, 4 if c.rl else 2)
        if c.kind == "mfma" and vw & c.r: n = max(n, 2)
        if c.kind == "vmem" and sw & c.r: n = max(n, 5)
    if p.kind == "mfma":
        big = 12 if p.passes == 8 else 8
        if c.kind == "valu":
            if vw & (c.r | c.w): n = max(n, big)
            if p.srcC & c.w: n = max(n, 7 if p.passes == 8 else 3)
        if c.kind in ("vmem", "ds"):
            if vw & (c.r | c.w): n = max(n, big)
        if c.kind == "mfma":
            if vw & c.srcAB: n = max(n, big)
            if vw & c.srcC:
                if not (p.w == c.srcC and p.passes == c.passes): n = max(n, 10 if p.passes == 8 else 6)
            elif vw & c.w:
                n = max(n, big)
    if p.kind == "salu" and ("s", "m0") in p.w and c.kind == "vmem" and c.lds: n = max(n, 1)
    if p.wide_store and c.w & p.wide_store:
        n = max(n, 2 if c.kind in ("valu", "mfma") else 1)
    return n


class Asm:
    def __init__(self):
        self.lines = []

    def __call__(self, s):
        for ln in s.split("\n"):
            ln = ln.strip()
            if ln:
                self.lines.append(ln)

    def finish(self):
        ins = [Ins(l) if not l.startswith(";") else None for l in self.lines]
        out = []
        hist = []
        branch_hist = {}
        for pass_ in range(3):
            out = []; hist = []
            npad = 0
            alt = []
            for l, x in zip(self.lines, ins):
                if x is None:
                    out.append(l); continue
                if x.label:
                    name = x.text.split(";")[0].strip()[:-1]
                    for h in branch_hist.get(name, []):
                        alt.append([list(h), 0])
                    out.append(l); continue
                if x.directive or x.states == 0:
                    out.append(l); continue
                req = 0
                for h in [hist] + [a[0] for a in alt]:
                    dist = 0
                    for p in reversed(h):
                        if dist >= 20: break
                        k = need(p, x)
                        if k > dist: req = max(req, k - dist)
                        dist += p.states
                if req > 0:
                    nop = Ins(f"s_nop {req-1}")
                    out.append(f"s_nop {req-1}"); hist.append(nop)
                    for a in alt: a[0].append(nop); a[1] += req
                    npad += 1
                out.append(l); hist.append(x)
                for a in alt: a[0].append(x); a[1] += x.states
                alt = [a for a in alt if a[1] < 21]
                if x.kind == "salu" and (x.mn.startswith("s_cbranch") or x.mn == "s_branch"):
                    tgt = x.ops[0]
                    if pass_ < 2:
                        branch_hist.setdefault(tgt, [])
                        branch_hist[tgt].append(hist[-24:])
                        for a in alt: branch_hist[tgt].append(a[0][-24:])
                if x.kind == "salu" and x.mn in ("s_branch", "s_endpgm"):
                    hist = []; alt = []
        self.npad = npad
        return "\n".join(out) + "\n"
```

```python
import sys, struct, os
sys.path.insert(0, os.path.dirname(os.path.abspath(__file__)))
from asmlib import Asm

NAME = "adaLN_cond__gqa_block_cached__dense_activation_relu__decode_kernel"
HDR = open(os.path.join(os.path.dirname(os.path.abspath(__file__)), "hdr.txt")).read()


def fhex(x):
    return "0x%08x" % struct.unpack("<I", struct.pack("<f", x))[0]


LOG2E = 1.4426950408889634
H_OFF = 0x0
MOD2_OFF = 0x1000
Q_OFF = 0x8000
ST_OFF = 0x10000
AP_OFF = 0x18000
OP_OFF = 0x26000
YP_OFF = 0xA6000
CLR_PER = 17 * 1024
STAMP_OFF = 0x8000000
L_WQ = 0x1E000
L_RED = L_WQ
L_WM = 0x21800
L_GA = L_WM
L_XR = L_WM + 1792
L_CB = L_WM + 2 * 1792
L_SB = L_WM + 3 * 1792
L_GB = L_WM + 4 * 1792
L_X1 = L_WM + 5 * 1792
L_S = 0x25000
L_Q = 0x25E00
L_STAT = 0x26200
L_LNS = 0x26240
L_H2 = 0x26280
L_RED2 = 0x26600
L_RED3 = 0x26E00
LDS_SIZE = 0x27400
M4 = "0x000f000f"


class VM:
    def __init__(self, A):
        self.A = A; self.ops = []; self.done = 0

    def issue(self, name, text, cond=False):
        self.A(text); self.ops.append((name, cond))

    def younger(self, idx):
        return sum(1 for (n, c) in self.ops[idx + 1:] if not c)

    def wait_for(self, name):
        idx = max(k for k, (n, c) in enumerate(self.ops) if n == name)
        if idx < self.done: return
        n = self.younger(idx)
        assert n <= 63
        self.A(f"s_waitcnt vmcnt({n})"); self.done = idx + 1

    def throttle(self, d):
        if len(self.ops) - self.done > d - 1:
            self.A(f"s_waitcnt vmcnt({d-1})"); self.done = len(self.ops) - (d - 1)

    def drain(self):
        self.A("s_waitcnt vmcnt(0)"); self.done = len(self.ops)


def gen(E=12, D=3, X=22, NQ=4, wstart=20, wrate=1, pvrate=3, stamps=False, wpol="", qpol="", prefetch=True, budget=200000, D2=None):
    A = Asm()
    if D2 is None: D2 = D
    NU = 37

    def stamp(k):
        if stamps: A(f"s_memrealtime s[{80+2*k}:{81+2*k}]")

    def setexec(lo, hi=None):
        if hi is None: hi = lo
        if lo == hi == -1: A("s_mov_b64 exec, -1"); return
        A(f"s_mov_b32 exec_lo, {lo}"); A(f"s_mov_b32 exec_hi, {hi}")

    def srd(d, lo, hi, off, nrec):
        if off is None:
            A(f"s_mov_b32 s{d}, s{lo}"); A(f"s_and_b32 s{d+1}, s{hi}, 0xffff")
        else:
            A(f"s_add_u32 s{d}, s{lo}, {off}"); A(f"s_addc_u32 s{d+1}, s{hi}, 0"); A(f"s_and_b32 s{d+1}, s{d+1}, 0xffff")
        A(f"s_mov_b32 s{d+2}, {nrec}"); A(f"s_mov_b32 s{d+3}, 0x20000")

    def dppop(op, d, a, b, ctrl, rm="0xf", bm="0xf"):
        A(f"{op}_dpp {d}, {a}, {b} {ctrl} row_mask:{rm} bank_mask:{bm}")

    def allreduce(op, regs, tmps, rors=(8, 4, 2, 1), s16=True, s32=True):
        for n in rors:
            for r in regs: dppop(op, r, r, r, f"row_ror:{n}")
        for (flag, sw) in ((s16, "v_permlane16_swap_b32"), (s32, "v_permlane32_swap_b32")):
            if not flag: continue
            for r, t in zip(regs, tmps): A(f"v_mov_b32 {t}, {r}")
            for r, t in zip(regs, tmps): A(f"{sw} {r}, {t}")
            for r, t in zip(regs, tmps): A(f"{op} {r}, {r}, {t}")

    def rnd(r):
        A(f"v_cvt_pk_bf16_f32 {r}, {r}, {r}"); A(f"v_lshlrev_b32 {r}, 16, {r}")

    def rndn(rs):
        for r in rs: A(f"v_cvt_pk_bf16_f32 {r}, {r}, {r}")
        for r in rs: A(f"v_lshlrev_b32 {r}, 16, {r}")

    def check_valid(regs, tmp, loop, done):
        regs = list(regs)
        if len(regs) == 1:
            t = regs[0]
        else:
            A(f"v_max3_u32 {tmp}, {regs[0]}, {regs[1]}, {regs[2]}" if len(regs) > 2 else f"v_max_u32 {tmp}, {regs[0]}, {regs[1]}")
            rest = regs[3:]
            while rest:
                if len(rest) >= 2:
                    A(f"v_max3_u32 {tmp}, {tmp}, {rest[0]}, {rest[1]}"); rest = rest[2:]
                else:
                    A(f"v_max_u32 {tmp}, {tmp}, {rest[0]}"); rest = rest[1:]
            t = tmp
        A(f"v_cmp_eq_u32 vcc, -1, {t}")
        A(f"s_cbranch_vccz {done}")
        A("s_sub_u32 s66, s66, 1"); A(f"s_cbranch_scc0 {loop}")
        A("s_mov_b32 s66, 0")

    def vr(a, n=4):
        return f"v[{a}:{a+n-1}]"

    A(f"{NAME}:")
    A("s_cmp_ge_u32 s2, 256"); A("s_cbranch_scc1 L_end")
    if stamps:
        A("s_memrealtime s[80:81]")
    A("s_load_dwordx16 s[16:31], s[0:1], 0")
    A("s_load_dwordx8 s[32:39], s[0:1], 64")
    A("s_load_dwordx2 s[40:41], s[0:1], 96")
    A("v_lshrrev_b32 v1, 6, v0"); A("v_and_b32 v0, 63, v0"); A("v_readfirstlane_b32 s3, v1")
    A("s_and_b32 s4, s2, 7"); A("s_lshr_b32 s5, s2, 3"); A("s_and_b32 s6, s5, 3"); A("s_lshr_b32 s7, s5, 2")
    A(f"s_mov_b32 s66, {budget}")
    A("v_lshrrev_b32 v3, 4, v0"); A("v_lshlrev_b32 v3, 7, v3")
    A("v_bfe_u32 v4, v0, 3, 1"); A("v_lshl_add_u32 v3, v4, 9, v3")
    A("v_and_b32 v4, 7, v0"); A("v_lshl_add_u32 v1, v4, 4, v3")
    A("v_lshlrev_b32 v2, 4, v0")
    A("s_lshl_b32 s9, s4, 2"); A("s_add_u32 s9, s9, s6")
    A("s_mul_i32 s10, s4, 7"); A("s_add_u32 s10, s10, s7")
    A("s_cmp_eq_u32 s3, 7"); A("s_cbranch_scc1 L_service")

    def tail_setup():
        A("s_lshl_b32 s11, s3, 14")
        A("v_lshrrev_b32 v153, 4, v0")
        A("v_bfe_u32 v154, v0, 2, 2")
        A("v_and_b32 v155, 3, v0")
        A("v_lshrrev_b32 v129, 1, v154"); A("v_and_b32 v128, 1, v153"); A("v_lshl_or_b32 v129, v128, 1, v129")
        A("v_lshl_add_u32 v127, v153, 3, v154")
        A("v_lshlrev_b32 v126, 7, v127"); A("v_lshl_add_u32 v126, v155, 3, v126"); A("v_add_u32 v149, s11, v126")
        for m in range(4):
            A(f"v_xor_b32 v150, {m}, v129"); A(f"v_lshl_add_u32 v{124+m if m != 3 else 151}, v150, 5, v149")
        A("v_lshlrev_b32 v150, 6, v127"); A("v_lshl_add_u32 v150, v155, 3, v150"); A("v_add_u32 v150, s11, v150")
        A("v_add_u32 v150, 8192, v150")
        A("v_mov_b32 v127, v151")
        A("v_xor_b32 v129, 1, v128"); A("v_lshl_add_u32 v129, v129, 5, v150"); A("v_lshl_add_u32 v128, v128, 5, v150")
        A("s_lshl_b32 s12, s3, 11"); A(f"s_add_u32 s12, s12, {L_RED}")
        A("v_and_b32 v150, 31, v0"); A("v_lshlrev_b32 v150, 5, v150"); A("v_lshrrev_b32 v151, 5, v0")
        A("v_lshl_add_u32 v150, v151, 4, v150"); A("v_add_u32 v133, s12, v150")
        A("s_lshl_b32 s12, s3, 8")
        A("v_and_b32 v150, 15, v0"); A("v_lshlrev_b32 v150, 4, v150"); A("v_add_u32 v150, s12, v150")
        A(f"v_add_u32 v134, {L_RED}, v150")
        A("s_lshl_b32 s13, s9, 14"); A(f"s_add_u32 s13, s13, {OP_OFF}")
        A("s_lshl_b32 s14, s7, 11"); A("s_add_u32 s14, s14, s13"); A("v_add_u32 v135, s14, v150")
        A("s_add_u32 s13, s13, s12")
        A("v_and_b32 v150, 7, v0"); A("v_lshrrev_b32 v151, 3, v0")
        A("v_lshlrev_b32 v152, 11, v150"); A("v_lshl_add_u32 v152, v151, 4, v152"); A("v_add_u32 v136, s13, v152")
        A(f"s_add_u32 s13, s12, {L_RED2}"); A("v_lshlrev_b32 v152, 4, v153"); A("v_add_u32 v137, s13, v152")
        A("v_and_b32 v138, 15, v0"); A("v_lshlrev_b32 v138, 4, v138")
        A("s_lshl_b32 s13, s6, 3"); A("s_add_u32 s14, s13, s4"); A("s_mul_i32 s14, s14, 1792")
        A("s_lshl_b32 s15, s7, 8"); A("s_add_u32 s14, s14, s15"); A(f"s_add_u32 s14, s14, {AP_OFF}")
        A("v_add_u32 v139, s14, v138"); A(f"v_add_u32 v138, {L_RED2}, v138")
        A("s_mul_i32 s13, s13, 1792"); A("s_add_u32 s13, s13, s12"); A(f"s_add_u32 s13, s13, {AP_OFF}")
        A("v_mul_u32_u24 v140, 1792, v151"); A("v_lshl_add_u32 v140, v150, 4, v140"); A("v_add_u32 v140, s13, v140")
        A("v_lshrrev_b32 v152, 5, v0"); A("v_lshlrev_b32 v152, 5, v152"); A("v_lshl_add_u32 v152, v150, 2, v152")
        A("v_bfe_u32 v151, v0, 4, 1"); A("v_lshl_add_u32 v152, v151, 1, v152")
        A("v_bfe_u32 v151, v0, 3, 1"); A("v_add_u32 v152, v151, v152")
        A("v_lshlrev_b32 v141, 2, v152"); A("v_add_u32 v141, s12, v141")
        A("s_lshl_b32 s13, s3, 7"); A(f"s_add_u32 s13, s13, {L_H2}")
        A("v_lshlrev_b32 v142, 1, v152"); A("v_add_u32 v142, s13, v142")
        A("v_lshlrev_b32 v152, 4, v153"); A("v_add_u32 v143, s13, v152")
        A("s_mul_i32 s13, s3, 144"); A(f"s_add_u32 s13, s13, {L_RED3}"); A("v_add_u32 v144, s13, v152")
        A("v_mul_u32_u24 v145, 144, v150"); A("v_lshl_add_u32 v145, v153, 5, v145"); A(f"v_add_u32 v145, {L_RED3}, v145")
        A("s_mul_i32 s13, s6, 28"); A("s_lshl_b32 s14, s3, 2"); A("s_add_u32 s14, s14, s13"); A("s_mul_i32 s14, s14, 56")
        A("s_add_u32 s14, s14, s10"); A("s_lshl_b32 s14, s14, 6"); A(f"s_add_u32 s14, s14, {YP_OFF}")
        A("v_add_u32 v146, s14, v152"); A("v_add_u32 v149, 3584, v146"); A("v_add_u32 v150, 7168, v146"); A("v_add_u32 v151, 10752, v146")
        A("s_add_u32 s13, s13, s10"); A("s_mul_i32 s13, s13, 3584"); A(f"s_add_u32 s13, s13, {YP_OFF}")
        A("v_add_u32 v147, s13, v2")
        A("v_lshlrev_b32 v148, 2, v155"); A("v_lshrrev_b32 v152, 5, v0"); A("v_lshl_add_u32 v148, v152, 1, v148")
        A("v_bfe_u32 v152, v0, 4, 1"); A("v_add_u32 v148, v152, v148"); A("s_lshl_b32 s13, s10, 4"); A("v_add_u32 v148, s13, v148")

    def wdma_setup():
        A("s_cmp_lt_u32 s7, 7"); A("s_cselect_b32 s67, 57344, 0"); A(f"s_cselect_b32 s68, {63*3584+64}, 0")
        A("s_lshl_b32 s12, s4, 9"); A("s_lshl_b32 s13, s3, 6"); A("s_add_u32 s12, s12, s13"); A("s_mul_i32 s12, s12, 896")
        A("s_lshl_b32 s13, s7, 7"); A("s_add_u32 s12, s12, s13")
        srd(52, 24, 25, "s12", "s67")
        A("s_mul_i32 s12, s3, 229376"); A("s_lshl_b32 s13, s10, 6"); A("s_add_u32 s12, s12, s13")
        srd(56, 28, 29, "s12", "s68")
        A("s_mul_i32 s12, s10, 28672"); A("s_lshl_b32 s13, s3, 7"); A("s_add_u32 s12, s12, s13")
        A("s_cmp_lt_u32 s7, 7"); A(f"s_cselect_b32 s67, {31*896+128}, 0")
        srd(60, 30, 31, "s12", "s67")
        A("v_lshrrev_b32 v131, 3, v0"); A("v_mul_u32_u24 v130, 896, v131")
        A("v_and_b32 v131, 2, v131"); A("v_and_b32 v132, 7, v0"); A("v_xor_b32 v131, v131, v132")
        A("v_xor_b32 v132, 4, v131")
        A("v_lshl_add_u32 v131, v131, 4, v130"); A("v_lshl_add_u32 v130, v132, 4, v130")
        A("v_lshrrev_b32 v132, 2, v0"); A("v_mul_u32_u24 v132, 3584, v132")
        A("v_lshrrev_b32 v153, 4, v0"); A("v_and_b32 v153, 2, v153"); A("v_and_b32 v154, 3, v0"); A("v_xor_b32 v153, v153, v154")
        A("v_lshl_add_u32 v132, v153, 4, v132")

    def wdma(vm, k):
        if k < 8:
            n = k; sr = "s[52:55]"; vo = "v131" if n % 2 == 0 else "v130"; so = n * 7168
        elif k < 12:
            n = k - 8; sr = "s[56:59]"; vo = "v132"; so = n * 57344
        else:
            n = k - 12; sr = "s[60:63]"; vo = "v131" if n % 2 == 0 else "v130"; so = n * 7168
        A(f"s_add_u32 m0, s11, {k*1024}")
        A(f"s_mov_b32 s69, {so}")
        vm.issue(f"W{k}", f"buffer_load_dwordx4 {vo}, {sr}, s69 offen {wpol} lds")

    vm = VM(A)
    A("s_lshl_b32 s11, s6, 3"); A("s_add_u32 s11, s11, s4"); A("s_lshl_b32 s11, s11, 21")
    A("s_lshl_b32 s12, s7, 18"); A("s_add_u32 s11, s11, s12")
    A("s_lshl_b32 s8, s3, 10")
    A("s_waitcnt lgkmcnt(0)")
    if stamps:
        for k in range(1, 8): A(f"s_mov_b64 s[{80+2*k}:{81+2*k}], s[80:81]")
    srd(44, 18, 19, "s11", "0x40000")

    def kreg(i): return 8 + 4 * i
    def vreg(n): return 156 + 4 * n if n < E else 8 + 4 * (n - E)

    def loadK(i):
        if i > 0: A("s_add_u32 s8, s8, 7168")
        vm.issue(f"K{i}", f"buffer_load_dwordx4 {vr(kreg(i))}, v1, s[44:47], s8 offen nt")

    def loadV(n):
        if n == 0: A("s_lshl_b32 s8, s3, 10")
        else: A("s_add_u32 s8, s8, 7168")
        vm.issue(f"V{n}", f"buffer_load_dwordx4 {vr(vreg(n))}, v2, s[48:51], s8 offen nt")

    for i in range(NU):
        vm.throttle(D); loadK(i)
        if i == D - 1:
            srd(48, 20, 21, "s11", "0x40000")
            A("v_and_b32 v4, 1, v0"); A("v_mov_b32 v5, 0xffff"); A("v_lshlrev_b32 v4, 4, v4"); A("v_lshlrev_b32 v5, v4, v5")
            A("v_bfe_u32 v4, v0, 1, 3")
            for r in range(4):
                A(f"v_cmp_eq_u32 vcc, {r}, v4"); A(f"v_cndmask_b32 v{208+r}, 0, v5, vcc")
            for r in range(4):
                A(f"s_mov_b32 s{70+2*r}, {hex(0x11111111 << r)}"); A(f"s_mov_b32 s{71+2*r}, {hex(0x11111111 << r)}")
            A("s_cmp_lt_u32 s3, 4"); A("s_cselect_b64 s[78:79], s[72:73], 0")
            A("v_mov_b32 v214, 0xff800000")
            A("v_and_b32 v215, 0x27, v0"); A("v_lshrrev_b32 v4, 1, v0"); A("v_and_b32 v4, 8, v4"); A("v_or_b32 v215, v215, v4")
            A("v_lshlrev_b32 v4, 1, v0"); A("v_and_b32 v4, 16, v4"); A("v_or_b32 v215, v215, v4"); A("v_lshlrev_b32 v215, 2, v215")
            A("s_lshl_b32 s12, s9, 10"); A("s_lshl_b32 s13, s7, 7"); A("s_add_u32 s12, s12, s13")
            A("s_lshl_b32 s13, s3, 4"); A("s_add_u32 s12, s12, s13"); A(f"s_add_u32 s12, s12, {ST_OFF}")
            A("v_bfe_u32 v4, v0, 4, 1"); A("v_lshlrev_b32 v4, 3, v4"); A("v_add_u32 v3, s12, v4")
            A(f"v_add_u32 v5, {L_STAT}, v4")
            A(f"v_add_u32 v6, {L_Q}, v2")
    stamp(1)
    for n in range(E):
        vm.throttle(D); loadV(n)
    vm.wait_for(f"K{NU-1}")
    stamp(2)
    A("s_barrier")
    A("ds_read_b128 v[204:207], v6"); A("s_waitcnt lgkmcnt(0)")
    stamp(3)

    def qk_mfma(G):
        for j in range(4):
            u = 4 * G + j
            if u < NU:
                d = 216 + 16 * (G & 1) + 4 * j
                A(f"v_mfma_f32_16x16x32_bf16 {vr(d)}, {vr(kreg(u))}, v[204:207], 0")

    def qk_extract(G):
        r = G & 3; a = 212 + (G >> 2)
        js = [j for j in range(4) if 4 * G + j < NU]
        others = [q for q in range(4) if q != r]
        for step, q in enumerate(others):
            for j in js:
                d = 216 + 16 * (G & 1) + 4 * j
                dppop("v_add_f32", f"v{248+j}", f"v{d+q}", f"v{d+r}" if step == 0 else f"v{248+j}", f"quad_perm:[{q},{q},{q},{q}]")
        A("v_permlane16_swap_b32 v248, v249")
        if len(js) > 2: A("v_permlane16_swap_b32 v250, v251")
        if len(js) == 4:
            A(f"s_mov_b64 exec, s[{70+2*r}:{71+2*r}]")
            dppop("v_add_f32", f"v{a}", "v249", "v248", "row_shl:4", bm="0x5")
            dppop("v_add_f32", f"v{a}", "v250", "v251", "row_shr:4", bm="0xa")
        else:
            assert len(js) == 1 and r == 1
            A("s_mov_b64 exec, s[78:79]")
            dppop("v_add_f32", f"v{a}", "v249", "v248", "row_shl:4", rm="0x5", bm="0x5")
        A("s_mov_b64 exec, -1")

    nextV = E
    qk_mfma(0)
    for G in range(10):
        if G + 1 < 10: qk_mfma(G + 1)
        qk_extract(G)
        if G % 2 == 1 and nextV < E + NQ:
            loadV(nextV); nextV += 1
    while nextV < E + NQ:
        loadV(nextV); nextV += 1
    for a in range(3): A(f"ds_bpermute_b32 v{212+a}, v215, v{212+a}")
    A(f"s_mov_b32 s12, {fhex(LOG2E/16)}")
    A("s_waitcnt lgkmcnt(0)")
    rndn(["v212", "v213", "v214"])
    A("v_max3_f32 v248, v212, v213, v214")
    allreduce("v_max_f32", ["v248"], ["v250"], s16=False)
    for a in range(3): A(f"v_sub_f32 v{216+a}, v{212+a}, v248")
    for a in range(3): A(f"v_mul_f32 v{216+a}, s12, v{216+a}")
    for a in range(3): A(f"v_exp_f32 v{216+a}, v{216+a}")
    A("v_add_f32 v249, v216, v217"); A("v_add_f32 v249, v249, v218")
    allreduce("v_add_f32", ["v249"], ["v250"], s16=False)
    setexec("0x00010001", 0)
    vm.issue("ST", "global_store_dwordx2 v3, v[248:249], s[40:41] sc1")
    setexec(-1)
    stamp(4)
    tail_setup(); wdma_setup()
    seq = []
    wk = 0
    for n in range(nextV, NU):
        seq.append(("V", n))
        if n >= wstart:
            for _ in range(wrate):
                if wk < 16: seq.append(("W", wk)); wk += 1
    while wk < 16:
        seq.append(("W", wk)); wk += 1
    lastV = max(k for k, o in enumerate(seq) if o[0] == "V")

    def issue(o, thr=True):
        if thr: vm.throttle(D2)
        if o[0] == "V": loadV(o[1])
        else: wdma(vm, o[1])

    k = 0
    while seq[k] != ("V", X):
        issue(seq[k]); k += 1
    A("s_barrier")
    A("ds_read_b64 v[248:249], v5")
    A(f"s_mov_b32 s12, {fhex(LOG2E/16)}")
    A("s_waitcnt lgkmcnt(0)")
    stamp(5)
    for a in range(3): A(f"v_sub_f32 v{212+a}, v{212+a}, v248")
    for a in range(3): A(f"v_mul_f32 v{212+a}, s12, v{212+a}")
    for a in range(3): A(f"v_exp_f32 v{212+a}, v{212+a}")
    for a in range(3): A(f"v_mul_f32 v{212+a}, v{212+a}, v249")
    for a in range(3): A(f"v_cvt_pk_bf16_f32 v{212+a}, v{212+a}, v{212+a}")

    def pv(n):
        vm.wait_for(f"V{n}")
        u = n & 15
        pos = ((u >> 2) & 3) | (((u >> 1) & 1) << 2) | ((u & 1) << 3)
        bb = 232 + 4 * (n & 1)
        for r in range(4):
            dppop("v_and_b32", f"v{bb+r}", f"v{212+(n>>4)}", f"v{208+r}", f"row_newbcast:{pos}")
        A(f"v_mfma_f32_32x32x16_bf16 v[216:231], {vr(bb)}, {vr(vreg(n))}, {'0' if n == 0 else 'v[216:231]'}")

    pn = 0
    while k < len(seq):
        issue(seq[k], thr=(k <= lastV)); k += 1
        if k <= lastV:
            for _ in range(pvrate):
                nm = f"V{pn}"
                idx = [q for q, (a_, c_) in enumerate(vm.ops) if a_ == nm]
                if idx and idx[0] < vm.done:
                    pv(pn); pn += 1
    while pn < NU:
        pv(pn); pn += 1
    A("ds_write_b128 v133, v[216:219]"); A("ds_write_b128 v133, v[224:227] offset:1024")
    stamp(6)
    A("s_waitcnt lgkmcnt(0)")
    A("s_branch L_tail")

    A("L_service:")
    A("s_setprio 3")
    vm = VM(A)
    A("v_and_b32 v8, 3, v0"); A("v_lshrrev_b32 v9, 2, v0")
    A("v_mul_u32_u24 v10, 896, v8"); A("v_lshl_add_u32 v10, v9, 4, v10")
    for k in range(4): A(f"v_mov_b32 v{4+k}, -1")
    A("v_lshrrev_b32 v11, 4, v0")
    A("v_and_b32 v12, 15, v0")
    A("v_lshrrev_b32 v13, 1, v0"); A("v_and_b32 v14, 3, v13"); A("v_bfe_u32 v15, v13, 2, 2"); A("v_lshl_add_u32 v14, v15, 3, v14")
    A("v_lshrrev_b32 v15, 4, v13"); A("v_lshl_add_u32 v14, v15, 2, v14")
    A("v_and_b32 v15, 1, v0")
    A("v_lshlrev_b32 v16, 3, v0")
    A("v_mov_b32 v17, 0"); A("v_mov_b32 v18, 1")
    A("s_waitcnt lgkmcnt(0)")
    if stamps:
        for k in range(1, 8): A(f"s_mov_b64 s[{80+2*k}:{81+2*k}], s[80:81]")

    def clears(vm):
        A("s_sub_u32 s12, s2, 192"); A(f"s_mul_i32 s12, s12, {CLR_PER}")
        A("v_add_u32 v20, s12, v2")
        for j in range(17):
            if j % 4 == 0 and j: A("v_add_u32 v20, 4096, v20")
            vm.issue("clr", f"global_store_dwordx4 v20, v[4:7], s[40:41] offset:{(j%4)*1024} sc1")

    def wait_flag(tag):
        A(f"L_fl{tag}:")
        A("global_load_dword v99, v17, s[38:39] offset:128 sc1")
        A("s_waitcnt vmcnt(0)")
        A("v_readfirstlane_b32 s12, v99")
        A(f"s_cmp_lg_u32 s12, 0"); A(f"s_cbranch_scc1 L_fl{tag}_done")
        A("s_sub_u32 s66, s66, 1"); A(f"s_cbranch_scc0 L_fl{tag}")
        A("s_mov_b32 s66, 0")
        A(f"L_fl{tag}_done:")

    def clears_and_wq(vm):
        A("s_lshl_b32 s12, s4, 12"); A("s_lshl_b32 s13, s5, 5"); A("s_add_u32 s12, s12, s13"); A(f"s_add_u32 s12, s12, {Q_OFF}")
        A("v_lshlrev_b32 v19, 10, v12"); A("v_lshl_add_u32 v19, v11, 3, v19"); A("v_add_u32 v19, s12, v19")
        A("s_lshl_b32 s12, s4, 10"); A("s_lshl_b32 s13, s5, 5"); A("s_add_u32 s12, s12, s13")
        srd(56, 22, 23, "s12", 447 * 8192 + 32)
        A("v_lshlrev_b32 v20, 13, v14"); A("v_lshl_add_u32 v20, v15, 4, v20")
        for t in range(14):
            A(f"s_mov_b32 m0, {L_WQ + t*1024}"); A(f"s_mov_b32 s69, {t*262144}")
            vm.issue("wq", f"buffer_load_dwordx4 v20, s[56:59], s69 offen {qpol} lds")
        if prefetch:
            lab = f"L_pc{len(A.lines)}"
            A("s_getpc_b64 s[64:65]"); A(f"{lab}:")
            A(f"s_sub_u32 s64, s64, {lab}-{NAME}"); A("s_subb_u32 s65, s65, 0")
            A("v_lshlrev_b32 v20, 7, v0")
            for j in range(NPRE):
                A(f"v_add_u32 v21, {j*8192}, v20"); A(f"v_min_u32 v21, L_code_end-{NAME}-4, v21")
                vm.issue("pre", f"global_load_dword v{23+j}, v21, s[64:65]")

    NPRE = 3
    A("s_cmp_eq_u32 s4, 7"); A("s_cbranch_scc1 L_nop1")
    A("s_cmp_ge_u32 s5, 24"); A("s_cbranch_scc1 L_nop1")
    A("s_cmp_lt_u32 s5, 8"); A("s_cbranch_scc0 L_p1b_par")
    A("s_lshl_b32 s14, s4, 3"); A("s_add_u32 s14, s14, s5")
    A("s_lshl_b32 s12, s14, 4"); A("s_mov_b32 s13, 896")
    A("s_lshr_b32 s15, s14, 2"); A("s_lshl_b32 s15, s15, 8"); A("s_and_b32 s14, s14, 3"); A("s_lshl_b32 s14, s14, 4"); A("s_add_u32 s15, s15, s14")
    A("v_lshlrev_b32 v30, 6, v12"); A("v_lshl_add_u32 v30, v11, 3, v30"); A("v_add_u32 v30, s15, v30")
    A(f"s_mov_b32 s74, {M4}"); A("s_mov_b32 s75, 0")
    A("s_branch L_p1_go")
    A("L_p1b_par:")
    A("s_lshl_b32 s14, s4, 4"); A("s_add_u32 s14, s14, s5"); A("s_sub_u32 s14, s14, 8"); A("s_lshl_b32 s14, s14, 5")
    A("s_add_u32 s12, s14, 1792"); A("s_mov_b32 s13, 16")
    A(f"s_add_u32 s15, s14, {MOD2_OFF}")
    A("v_mul_u32_u24 v30, 3584, v12"); A("v_lshl_add_u32 v30, v11, 3, v30"); A("v_add_u32 v30, s15, v30")
    A(f"s_mov_b32 s74, {M4}"); A(f"s_mov_b32 s75, {M4}")
    A("L_p1_go:")
    srd(44, 32, 33, None, 3584); srd(48, 16, 17, None, 3584)
    for q in range(4): vm.issue("c", f"buffer_load_dwordx4 {vr(32+4*q)}, v10, s[44:47], 0 offen offset:{q*256}")
    for q in range(4): vm.issue("x", f"buffer_load_dwordx4 {vr(48+4*q)}, v10, s[48:51], 0 offen offset:{q*256}")
    A("v_mul_u32_u24 v31, 896, v8"); A("v_and_b32 v28, 1, v11"); A("v_lshl_add_u32 v31, v28, 3, v31"); A("v_add_u32 v31, s12, v31")
    vm.issue("xc", "buffer_load_dwordx2 v[28:29], v31, s[48:51], 0 offen")
    srd(52, 34, 35, "s12", 447 * 5376 + 896 + 16)
    A("v_mul_u32_u24 v20, 5376, v14"); A("v_mul_lo_u32 v21, s13, v15"); A("v_add_u32 v20, v20, v21")
    for t in range(14):
        A(f"s_mov_b32 m0, {L_WM + t*1024}"); A(f"s_mov_b32 s69, {t*172032}")
        vm.issue("wm", f"buffer_load_dwordx4 v20, s[52:55], s69 offen {qpol} lds")
    clears_and_wq(vm)
    vm.wait_for("c")
    stamp(1)
    A(f"s_mov_b32 s14, {fhex(-LOG2E)}")
    A(f"v_add_u32 v31, {L_S}, v10")
    for q in range(4):
        src = 32 + 4 * q
        for j in range(4):
            A(f"v_lshlrev_b32 v{64+2*j}, 16, v{src+j}"); A(f"v_and_b32 v{65+2*j}, 0xffff0000, v{src+j}")
        for j in range(8): A(f"v_mul_f32 v{72+j}, s14, v{64+j}")
        for j in range(8): A(f"v_exp_f32 v{72+j}, v{72+j}")
        for j in range(8): A(f"v_add_f32 v{72+j}, 1.0, v{72+j}")
        for j in range(8): A(f"v_rcp_f32 v{72+j}, v{72+j}")
        for j in range(8): A(f"v_mul_f32 v{72+j}, v{64+j}, v{72+j}")
        for j in range(4): A(f"v_cvt_pk_bf16_f32 v{src+j}, v{72+2*j}, v{73+2*j}")
        if q == 3: setexec(-1, 0)
        A(f"ds_write_b128 v31, {vr(src)} offset:{q*256}")
        if q == 3: setexec(-1)
    vm.wait_for("xc")
    for q in range(4):
        src = 48 + 4 * q
        for j in range(4):
            A(f"v_lshlrev_b32 v{64+8*q+2*j}, 16, v{src+j}"); A(f"v_and_b32 v{65+8*q+2*j}, 0xffff0000, v{src+j}")
    A("v_add_f32 v96, v64, v65"); A("v_add_f32 v97, v66, v67")
    for j in range(4, 24, 2):
        A(f"v_add_f32 v96, v96, v{64+j}"); A(f"v_add_f32 v97, v97, v{65+j}")
    setexec(-1, 0)
    for j in range(24, 32, 2):
        A(f"v_add_f32 v96, v96, v{64+j}"); A(f"v_add_f32 v97, v97, v{65+j}")
    setexec(-1)
    A("v_add_f32 v96, v96, v97")
    allreduce("v_add_f32", ["v96"], ["v97"], rors=(4, 8))
    A(f"v_mul_f32 v96, {fhex(1/448)}, v96")
    for j in range(32): A(f"v_sub_f32 v{64+j}, v{64+j}, v96")
    A("v_mul_f32 v98, v64, v64"); A("v_mul_f32 v97, v65, v65")
    for j in range(2, 24, 2):
        A(f"v_fmac_f32 v98, v{64+j}, v{64+j}"); A(f"v_fmac_f32 v97, v{65+j}, v{65+j}")
    setexec(-1, 0)
    for j in range(24, 32, 2):
        A(f"v_fmac_f32 v98, v{64+j}, v{64+j}"); A(f"v_fmac_f32 v97, v{65+j}, v{65+j}")
    setexec(-1)
    A("v_add_f32 v98, v98, v97")
    allreduce("v_add_f32", ["v98"], ["v97"], rors=(4, 8))
    A(f"v_mul_f32 v98, {fhex(1/448)}, v98")
    rndn(["v96", "v98"])
    A(f"v_add_f32 v98, {fhex(1e-5)}, v98"); rnd("v98"); A("v_sqrt_f32 v98, v98"); rnd("v98"); A("v_rcp_f32 v98, v98")
    A("v_mul_u32_u24 v31, 896, v8"); A("v_lshl_add_u32 v31, v11, 4, v31"); A(f"v_add_u32 v31, {L_S}, v31")
    A("s_waitcnt lgkmcnt(0)")
    for t in range(14): A(f"ds_read_b128 {vr(100+4*t)}, v31 offset:{t*64}")
    A(f"v_add_u32 v31, {L_WM}, v16")
    vm.wait_for("wm")
    stamp(2)
    for t in range(14):
        for hf in range(2):
            A(f"ds_read_b64_tr_b16 {vr(156+4*t+2*hf, 2)}, v31 offset:{t*1024+hf*512}")
    A("s_waitcnt lgkmcnt(0)")
    for t in range(14):
        A(f"v_mfma_f32_16x16x32_bf16 v[32:35], {vr(156+4*t)}, {vr(100+4*t)}, {'0' if t == 0 else 'v[32:35]'}")
    A("v_cvt_pk_bf16_f32 v36, v32, v33"); A("v_cvt_pk_bf16_f32 v37, v34, v35")
    A("s_cmp_lt_u32 s5, 8"); A("s_cbranch_scc0 L_p1_pub")
    A("v_mov_b32 v38, v36"); A("v_mov_b32 v39, v37")
    A("v_permlane32_swap_b32 v36, v38"); A("v_permlane32_swap_b32 v37, v39")
    for (d, s_) in ((40, 36), (42, 37), (44, 38), (46, 39), (48, 28), (50, 29)):
        A(f"v_lshlrev_b32 v{d}, 16, v{s_}"); A(f"v_and_b32 v{d+1}, 0xffff0000, v{s_}")
    for j in range(4): A(f"v_sub_f32 v{48+j}, v{48+j}, v96")
    for j in range(4): A(f"v_add_f32 v{44+j}, 1.0, v{44+j}")
    rndn([f"v{44+j}" for j in range(8)])
    for j in range(4): A(f"v_mul_f32 v{48+j}, v{48+j}, v98")
    rndn([f"v{48+j}" for j in range(4)])
    for j in range(4): A(f"v_mul_f32 v{48+j}, v{48+j}, v{44+j}")
    rndn([f"v{48+j}" for j in range(4)])
    for j in range(4): A(f"v_add_f32 v{48+j}, v{48+j}, v{40+j}")
    A("v_cvt_pk_bf16_f32 v36, v48, v49"); A("v_cvt_pk_bf16_f32 v37, v50, v51")
    A("L_p1_pub:")
    A("v_min_u32 v36, -2, v36"); A("v_min_u32 v37, -2, v37")
    wait_flag("a")
    A("s_mov_b64 exec, s[74:75]")
    vm.issue("pub", "global_store_dwordx2 v30, v[36:37], s[40:41] sc1")
    setexec(-1)
    A("s_branch L_p1_done")
    A("L_nop1:")
    vm = VM(A)
    A("s_cmp_ge_u32 s5, 24"); A("s_cbranch_scc0 L_noclr")
    clears(vm)
    clears_and_wq(vm)
    vm.wait_for("clr")
    setexec(1, 0)
    A("global_atomic_add v99, v17, v18, s[38:39] sc0 sc1")
    A("s_waitcnt vmcnt(0)")
    A("v_readfirstlane_b32 s12, v99")
    A("s_cmp_eq_u32 s12, 63"); A("s_cbranch_scc0 L_notlast")
    A("global_store_dword v17, v18, s[38:39] offset:128 sc1")
    A("L_notlast:")
    setexec(-1)
    stamp(1)
    A("s_branch L_clr_done")
    A("L_noclr:")
    vm = VM(A)
    clears_and_wq(vm)
    A("L_clr_done:")
    wait_flag("b")
    A("L_p1_done:")
    stamp(3)
    A(f"v_add_u32 v31, {L_WQ}, v16")
    for t in range(14):
        for hf in range(2):
            A(f"ds_read_b64_tr_b16 {vr(156+4*t+2*hf, 2)}, v31 offset:{t*1024+hf*512}")
    A("v_lshlrev_b32 v31, 6, v12"); A("v_lshl_add_u32 v31, v11, 4, v31")
    setexec(M4)
    A("L_ph:")
    for t in range(14): A(f"global_load_dwordx4 {vr(100+4*t)}, v31, s[40:41] offset:{H_OFF + t*256} sc1")
    A("s_waitcnt vmcnt(0)")
    check_valid([f"v{100+j}" for j in range(56)], "v33", "L_ph", "L_ph_done")
    A("L_ph_done:")
    setexec(-1)
    A("s_waitcnt lgkmcnt(0)")
    stamp(4)
    for t in range(14):
        A(f"v_mfma_f32_16x16x32_bf16 v[32:35], {vr(156+4*t)}, {vr(100+4*t)}, {'0' if t == 0 else 'v[32:35]'}")
    A("v_cvt_pk_bf16_f32 v36, v32, v33"); A("v_cvt_pk_bf16_f32 v37, v34, v35")
    A("v_min_u32 v36, -2, v36"); A("v_min_u32 v37, -2, v37")
    setexec(M4)
    A("global_store_dwordx2 v19, v[36:37], s[40:41] sc1")
    setexec(-1)
    A("s_lshl_b32 s12, s9, 10"); A(f"s_add_u32 s12, s12, {Q_OFF}"); A("v_add_u32 v31, s12, v1")
    A(f"v_add_u32 v30, {L_Q}, v2")
    A("L_pq:")
    A("global_load_dwordx4 v[32:35], v31, s[40:41] sc1")
    A("s_waitcnt vmcnt(0)")
    check_valid(["v32", "v33", "v34", "v35"], "v36", "L_pq", "L_pq_done")
    A("L_pq_done:")
    A("ds_write_b128 v30, v[32:35]")
    A("s_waitcnt lgkmcnt(0)")
    stamp(5)
    A("s_barrier")
    A("s_mul_i32 s12, s6, 3584"); A(f"s_add_u32 s12, s12, {MOD2_OFF}"); A("v_add_u32 v31, s12, v2")
    A("s_mul_i32 s12, s6, 896"); A("v_add_u32 v30, s12, v2")
    setexec(-1, "0x00ffffff")
    A("global_load_dwordx4 v[48:51], v30, s[16:17]")
    A("L_pm:")
    for q in range(4): A(f"global_load_dwordx4 {vr(32+4*q)}, v31, s[40:41] offset:{q*896} sc1")
    A("s_waitcnt vmcnt(0)")
    check_valid([f"v{32+j}" for j in range(16)], "v52", "L_pm", "L_pm_done")
    A("L_pm_done:")
    A("v_lshlrev_b32 v30, 5, v0"); A(f"v_add_u32 v30, {L_WM}, v30")
    for (src, dst) in ((32, L_GA), (36, L_SB), (40, L_CB), (44, L_GB), (48, L_XR)):
        for j in range(4):
            A(f"v_lshlrev_b32 v{64+2*j}, 16, v{src+j}"); A(f"v_and_b32 v{65+2*j}, 0xffff0000, v{src+j}")
        if dst == L_CB:
            for j in range(8): A(f"v_add_f32 v{64+j}, 1.0, v{64+j}")
            rndn([f"v{64+j}" for j in range(8)])
        A(f"ds_write_b128 v30, v[64:67] offset:{dst-L_WM}"); A(f"ds_write_b128 v30, v[68:71] offset:{dst-L_WM+16}")
        A("s_waitcnt lgkmcnt(0)")
    setexec(-1)
    A(f"v_lshlrev_b32 v30, 2, v0"); A(f"v_add_u32 v30, {L_RED3 + 7*144}, v30")
    setexec(-1, 0)
    A("ds_write_b32 v30, v17")
    setexec(-1)
    A("s_lshl_b32 s12, s9, 10"); A(f"s_add_u32 s12, s12, {ST_OFF}"); A("v_add_u32 v31, s12, v2")
    A("v_mov_b32 v32, 0xff800000"); A("v_mov_b32 v33, 0"); A("v_mov_b32 v34, 0xff800000"); A("v_mov_b32 v35, 0")
    setexec("0x7f7f7f7f")
    A("L_ps:")
    A("global_load_dwordx4 v[32:35], v31, s[40:41] sc1")
    A("s_waitcnt vmcnt(0)")
    check_valid(["v32", "v33", "v34", "v35"], "v36", "L_ps", "L_ps_done")
    A("L_ps_done:")
    setexec(-1)
    stamp(6)
    A("v_mov_b32 v36, v32"); A("v_mov_b32 v38, v34")
    A(f"s_mov_b32 s12, {fhex(LOG2E/16)}")
    allreduce("v_max_f32", ["v36", "v38"], ["v40", "v41"])
    A("v_sub_f32 v32, v32, v36"); A("v_sub_f32 v34, v34, v38")
    A("v_mul_f32 v32, s12, v32"); A("v_mul_f32 v34, s12, v34")
    A("v_exp_f32 v32, v32"); A("v_exp_f32 v34, v34")
    A("v_mul_f32 v37, v32, v33"); A("v_mul_f32 v39, v34, v35")
    allreduce("v_add_f32", ["v37", "v39"], ["v40", "v41"])
    A("v_rcp_f32 v37, v37"); A("v_rcp_f32 v39, v39")
    A(f"v_mov_b32 v30, {L_STAT}")
    setexec(1, 0)
    A("ds_write_b128 v30, v[36:39]")
    setexec(-1)
    A("s_waitcnt lgkmcnt(0)")
    A("s_barrier")
    tail_setup(); wdma_setup()
    vm = VM(A)
    for k in range(8): wdma(vm, k)

    A("L_tail:")
    A("s_barrier")
    for p in range(7): A(f"ds_read_b128 {vr(160+4*p)}, v134 offset:{p*2048}")
    A("s_waitcnt lgkmcnt(0)")
    for j in range(4):
        A(f"v_add_f32 v{160+j}, v{160+j}, v{164+j}"); A(f"v_add_f32 v{168+j}, v{168+j}, v{172+j}"); A(f"v_add_f32 v{176+j}, v{176+j}, v{180+j}")
    for j in range(4):
        A(f"v_add_f32 v{160+j}, v{160+j}, v{168+j}"); A(f"v_add_f32 v{176+j}, v{176+j}, v{184+j}")
    for j in range(4): A(f"v_add_f32 v{160+j}, v{160+j}, v{176+j}")
    setexec("0xffff", 0)
    A("global_store_dwordx4 v135, v[160:163], s[40:41] sc1")
    setexec(-1)
    A("s_cmp_eq_u32 s7, 7"); A("s_cbranch_scc1 L_exit")
    A("global_load_dwordx4 v[164:167], v136, s[40:41] sc1")
    A("global_load_dwordx4 v[168:171], v136, s[40:41] offset:128 sc1")
    A("s_waitcnt vmcnt(3)")
    for t in range(2):
        for m in range(4):
            for hf in range(2):
                A(f"ds_read_b64_tr_b16 {vr(8+16*t+4*m+2*hf, 2)}, v{124+m} offset:{hf*4096+t*512}")
    for t in range(2):
        for m in range(2):
            for hf in range(2):
                A(f"ds_read_b64_tr_b16 {vr(40+8*t+4*m+2*hf, 2)}, v{128+m} offset:{t*2048+hf*256}")
    for m in range(4):
        for hf in range(2):
            A(f"ds_read_b64_tr_b16 {vr(56+4*m+2*hf, 2)}, v{124+m} offset:{12288+hf*512}")
    A(f"ds_read_b32 v72, v141 offset:{L_GA - 0x20000}")
    A(f"ds_read_b32 v73, v141 offset:{L_XR - 0x20000}")
    A(f"ds_read_b32 v74, v141 offset:{L_CB - 0x20000}")
    A(f"ds_read_b32 v75, v141 offset:{L_SB - 0x20000}")
    A("s_branch L_pa_wait")
    A("L_pa:")
    A("global_load_dwordx4 v[164:167], v136, s[40:41] sc1")
    A("global_load_dwordx4 v[168:171], v136, s[40:41] offset:128 sc1")
    A("L_pa_wait:")
    A("s_waitcnt vmcnt(0)")
    check_valid([f"v{164+j}" for j in range(8)], "v172", "L_pa", "L_pa_done")
    A("L_pa_done:")
    for ctrl in ("quad_perm:[1,0,3,2]", "quad_perm:[2,3,0,1]", "row_half_mirror"):
        for j in range(8): dppop("v_add_f32", f"v{164+j}", f"v{164+j}", f"v{164+j}", ctrl)
    for j in range(4): A(f"v_cvt_pk_bf16_f32 v{172+j}, v{164+2*j}, v{165+2*j}")
    for j in range(4): A(f"v_mov_b32_dpp v{176+j}, v{172+j} row_ror:8 row_mask:0xf bank_mask:0xf")
    A("s_waitcnt lgkmcnt(0)")
    for m in range(4): A(f"v_mfma_f32_16x16x32_bf16 {vr(180+4*m)}, {vr(8+4*m)}, v[172:175], 0")
    for m in range(4): A(f"v_mfma_f32_16x16x32_bf16 {vr(180+4*m)}, {vr(24+4*m)}, v[176:179], {vr(180+4*m)}")
    setexec("0x00010001")
    for m in range(4): A(f"ds_write_b128 v137, {vr(180+4*m)} offset:{m*64}")
    setexec(-1)
    A("s_waitcnt lgkmcnt(0)")
    A("s_barrier")
    A("s_cmp_eq_u32 s3, 7"); A("s_cbranch_scc1 L_w7")
    A("L_pb:")
    A("global_load_dwordx4 v[164:167], v140, s[40:41] sc1")
    A("global_load_dwordx4 v[168:171], v140, s[40:41] offset:128 sc1")
    A("s_waitcnt vmcnt(0)")
    check_valid([f"v{164+j}" for j in range(8)], "v172", "L_pb", "L_pb_done")
    A("L_pb_done:")
    if stamps:
        A("s_memrealtime s[94:95]")
    for j in range(4): A(f"v_permlane32_swap_b32 v{164+j}, v{168+j}")
    for j in range(4): A(f"v_add_f32 v{164+j}, v{164+j}, v{168+j}")
    A("v_permlane16_swap_b32 v164, v166"); A("v_permlane16_swap_b32 v165, v167")
    A("v_add_f32 v164, v164, v166"); A("v_add_f32 v165, v165, v167")
    dppop("v_add_f32", "v168", "v164", "v164", "row_ror:8", bm="0x3")
    dppop("v_add_f32", "v168", "v165", "v165", "row_ror:8", bm="0xc")
    rnd("v168"); A("v_mul_f32 v168, v72, v168"); rnd("v168"); A("v_add_f32 v168, v73, v168"); rnd("v168")
    A("v_readfirstlane_b32 s12, v168")
    A(f"ds_write_b32 v141, v168 offset:{L_X1 - 0x20000}")
    A("v_subrev_f32 v169, s12, v168"); A("v_mul_f32 v170, v169, v169")
    allreduce("v_add_f32", ["v169", "v170"], ["v171", "v172"])
    A(f"v_mul_f32 v171, {fhex(1/64)}, v169")
    A("v_fma_f32 v173, -v171, v169, v170"); A("v_add_f32 v172, s12, v171")
    A("s_lshl_b32 s12, s3, 3"); A(f"s_add_u32 s12, s12, {L_LNS}"); A("v_mov_b32 v174, s12")
    setexec(1, 0)
    A("ds_write_b64 v174, v[172:173]")
    setexec(-1)
    A(f"v_mov_b32 v174, {L_LNS}")
    A("s_waitcnt lgkmcnt(0)")
    A("s_barrier")
    for q in range(3): A(f"ds_read_b128 {vr(176+4*q)}, v174 offset:{q*16}")
    A("ds_read_b64 v[188:189], v174 offset:48")
    A("s_waitcnt lgkmcnt(0)")
    A("v_add_f32 v190, v176, v178"); A("v_add_f32 v191, v180, v182"); A("v_add_f32 v192, v184, v186")
    A("v_add_f32 v193, v177, v179"); A("v_add_f32 v194, v181, v183"); A("v_add_f32 v195, v185, v187")
    A("v_add_f32 v190, v190, v191"); A("v_add_f32 v192, v192, v188"); A("v_add_f32 v193, v193, v194"); A("v_add_f32 v195, v195, v189")
    A("v_add_f32 v190, v190, v192"); A("v_add_f32 v193, v193, v195")
    A(f"v_mul_f32 v190, {fhex(1/7)}, v190")
    for j in range(7): A(f"v_sub_f32 v{176+2*j}, v{176+2*j}, v190")
    A("v_mul_f32 v191, v176, v176"); A("v_mul_f32 v192, v178, v178")
    A("v_fmac_f32 v191, v180, v180"); A("v_fmac_f32 v192, v182, v182"); A("v_fmac_f32 v191, v184, v184"); A("v_fmac_f32 v192, v186, v186")
    A("v_fmac_f32 v191, v188, v188"); A("v_cvt_pk_bf16_f32 v190, v190, v190"); A("v_add_f32 v191, v191, v192")
    A("v_lshlrev_b32 v190, 16, v190")
    A(f"v_fmac_f32 v193, {fhex(64.0)}, v191")
    A("v_sub_f32 v168, v168, v190")
    A(f"v_mul_f32 v193, {fhex(1/448)}, v193")
    rndn(["v193", "v168"])
    A(f"v_add_f32 v193, {fhex(1e-5)}, v193"); rnd("v193"); A("v_sqrt_f32 v193, v193"); rnd("v193"); A("v_rcp_f32 v193, v193")
    A("v_mul_f32 v168, v168, v193"); rnd("v168"); A("v_mul_f32 v168, v168, v74"); rnd("v168"); A("v_add_f32 v168, v168, v75")
    A("v_cvt_pk_bf16_f32 v168, v168, v168")
    A("ds_write_b16 v142, v168")
    A("s_waitcnt lgkmcnt(0)")
    A("ds_read_b128 v[176:179], v143"); A("ds_read_b128 v[180:183], v143 offset:64")
    A("s_waitcnt lgkmcnt(0)")
    for m in range(2): A(f"v_mfma_f32_16x16x32_bf16 {vr(184+4*m)}, {vr(40+4*m)}, v[176:179], 0")
    for m in range(2): A(f"v_mfma_f32_16x16x32_bf16 {vr(184+4*m)}, {vr(48+4*m)}, v[180:183], {vr(184+4*m)}")
    setexec("0x00010001")
    for m in range(2): A(f"ds_write_b128 v144, {vr(184+4*m)} offset:{m*64}")
    setexec(-1)
    A("s_waitcnt lgkmcnt(0)")
    A("s_barrier")
    A("ds_read_b128 v[164:167], v145"); A("ds_read_b128 v[168:171], v145 offset:16")
    A("s_waitcnt lgkmcnt(0)")
    for ctrl in ("quad_perm:[1,0,3,2]", "quad_perm:[2,3,0,1]", "row_half_mirror"):
        for j in range(8): dppop("v_add_f32", f"v{164+j}", f"v{164+j}", f"v{164+j}", ctrl)
    for j in range(8): A(f"v_max_f32 v{164+j}, 0, v{164+j}")
    for j in range(4): A(f"v_cvt_pk_bf16_f32 v{172+j}, v{164+2*j}, v{165+2*j}")
    for m in range(4): A(f"v_mfma_f32_16x16x32_bf16 {vr(180+4*m)}, {vr(56+4*m)}, v[172:175], 0")
    setexec("0x00010001")
    for m, a in enumerate((146, 149, 150, 151)): A(f"global_store_dwordx4 v{a}, {vr(180+4*m)}, s[40:41] sc1")
    A("s_branch L_exit")
    A("L_w7:")
    for p in range(8): A(f"ds_read_b128 {vr(160+4*p)}, v138 offset:{p*256}")
    A("s_waitcnt lgkmcnt(0)")
    for j in range(4):
        for p in range(0, 8, 2): A(f"v_add_f32 v{160+4*p+j}, v{160+4*p+j}, v{164+4*p+j}")
    for j in range(4):
        A(f"v_add_f32 v{160+j}, v{160+j}, v{168+j}"); A(f"v_add_f32 v{176+j}, v{176+j}, v{184+j}")
    for j in range(4): A(f"v_add_f32 v{160+j}, v{160+j}, v{176+j}")
    setexec("0xffff", 0)
    A("global_store_dwordx4 v139, v[160:163], s[40:41] sc1")
    setexec(-1)
    A("s_cmp_ge_u32 s10, 28"); A("s_cbranch_scc1 L_exit")
    A("v_lshlrev_b32 v192, 2, v148"); A("v_add_u32 v192, 0x20000, v192")
    A("s_mul_i32 s12, s6, 448"); A("v_add_u32 v148, s12, v148"); A("v_lshlrev_b32 v148, 1, v148")
    for j in range(4): A(f"v_mov_b32 v{176+j}, 0")
    A("s_barrier")
    A(f"ds_read_b32 v193, v192 offset:{L_X1 - 0x20000}"); A(f"ds_read_b32 v194, v192 offset:{L_GB - 0x20000}")
    A("s_barrier")
    A("L_pc:")
    for q in range(3): A(f"global_load_dwordx4 {vr(164+4*q)}, v147, s[40:41] offset:{q*1024} sc1")
    setexec(-1, 0)
    A("global_load_dwordx4 v[176:179], v147, s[40:41] offset:3072 sc1")
    setexec(-1)
    A("s_waitcnt vmcnt(0)")
    check_valid([f"v{164+j}" for j in range(16)], "v180", "L_pc", "L_pc_done")
    A("L_pc_done:")
    for j in range(4): A(f"v_add_f32 v{164+j}, v{164+j}, v{168+j}"); A(f"v_add_f32 v{172+j}, v{172+j}, v{176+j}")
    for j in range(4): A(f"v_add_f32 v{164+j}, v{164+j}, v{172+j}")
    A("v_permlane32_swap_b32 v164, v166"); A("v_permlane32_swap_b32 v165, v167")
    A("v_add_f32 v164, v164, v166"); A("v_add_f32 v165, v165, v167")
    A("v_permlane16_swap_b32 v164, v165"); A("v_add_f32 v164, v164, v165")
    dppop("v_add_f32", "v164", "v164", "v164", "row_ror:8"); dppop("v_add_f32", "v164", "v164", "v164", "row_ror:4")
    A("s_waitcnt lgkmcnt(0)")
    rnd("v164"); A("v_mul_f32 v164, v194, v164"); rnd("v164"); A("v_add_f32 v164, v193, v164")
    A("v_cvt_pk_bf16_f32 v164, v164, v164")
    setexec(M4)
    A("global_store_short v148, v164, s[36:37]")
    A("L_exit:")
    if stamps:
        setexec(-1)
        A("s_cmp_eq_u32 s3, 7"); A("s_cbranch_scc0 L_st0")
        A("s_memrealtime s[94:95]")
        A("L_st0:")
        A("s_waitcnt lgkmcnt(0)")
        A("s_cmp_eq_u32 s3, 0"); A("s_cbranch_scc1 L_st1"); A("s_cmp_eq_u32 s3, 7"); A("s_cbranch_scc0 L_end")
        A("L_st1:")
        A("s_lshl_b32 s12, s2, 7"); A("s_lshr_b32 s13, s3, 2"); A("s_lshl_b32 s13, s13, 6"); A("s_add_u32 s12, s12, s13")
        A(f"s_add_u32 s12, s12, {STAMP_OFF}"); A("v_mov_b32 v1, s12")
        for k in range(8):
            A(f"v_mov_b32 v2, s{80+2*k}"); A(f"v_mov_b32 v3, s{81+2*k}")
            A(f"global_store_dwordx2 v1, v[2:3], s[40:41] offset:{k*8}")
    A("L_end:")
    A("s_endpgm")
    A("L_code_end:")
    body = A.finish()
    body = body.replace("v_lshlrev_b32 v141, 2, v152\nv_add_u32 v141, s12, v141", "v_lshlrev_b32 v141, 2, v152\nv_add_u32 v141, s12, v141\nv_add_u32 v141, 0x20000, v141")
    o = HDR + f"; @launch grid=(256,1,1) block=(512,1,1) lds={LDS_SIZE}\n"
    o += '.amdgcn_target "amdgcn-amd-amdhsa--gfx950"\n.text\n'
    o += f".globl {NAME}\n.p2align 8\n.type {NAME},@function\n"
    o += body
    o += '.section .rodata,"a"\n.p2align 6\n'
    o += f".amdhsa_kernel {NAME}\n  .amdhsa_next_free_vgpr 256\n  .amdhsa_next_free_sgpr 96\n  .amdhsa_accum_offset 256\n"
    o += "  .amdhsa_group_segment_fixed_size 0\n  .amdhsa_kernarg_size 104\n  .amdhsa_user_sgpr_count 2\n"
    o += "  .amdhsa_user_sgpr_kernarg_segment_ptr 1\n  .amdhsa_system_sgpr_workgroup_id_x 1\n"
    o += "  .amdhsa_float_denorm_mode_32 3\n.end_amdhsa_kernel\n"
    return o


if __name__ == "__main__":
    import json
    out = sys.argv[1]
    kw = {}
    for a in sys.argv[2:]:
        k, v = a.split("=")
        try: v = json.loads(v)
        except Exception: pass
        kw[k] = v
    open(out, "w").write(gen(**kw))
```

```python
import re

TRANS = ("v_exp_f32", "v_log_f32", "v_rcp_f32", "v_rsq_f32", "v_sqrt_f32", "v_sin_f32", "v_cos_f32")


def regs_of(tok):
    tok = tok.strip()
    tok = tok.lstrip("-")
    m = re.fullmatch(r"abs\((.*)\)", tok)
    if m:
        tok = m.group(1)
    m = re.fullmatch(r"\|(.*)\|", tok)
    if m:
        tok = m.group(1)
    if tok == "vcc":
        return {("s", "vcc_lo"), ("s", "vcc_hi")}
    if tok in ("vcc_lo", "vcc_hi"):
        return {("s", tok)}
    if tok == "exec":
        return {("s", "exec")}
    if tok == "m0":
        return {("s", "m0")}
    m = re.fullmatch(r"([vs])(\d+)", tok)
    if m:
        return {(m.group(1), int(m.group(2)))}
    m = re.fullmatch(r"([vs])\[(\d+):(\d+)\]", tok)
    if m:
        return {(m.group(1), k) for k in range(int(m.group(2)), int(m.group(3)) + 1)}
    return set()


class Ins:
    def __init__(self, text):
        self.text = text
        t = text.split(";")[0].strip()
        self.label = t.endswith(":")
        self.directive = t.startswith(".")
        self.kind = None
        self.w = set(); self.r = set()
        self.dpp = False; self.trans = False; self.perm = False; self.rl = False
        self.passes = 0; self.srcC = set(); self.srcAB = set()
        self.states = 1; self.lds = False; self.wide_store = set()
        if self.label or self.directive or not t:
            self.states = 0
            return
        parts = t.split(None, 1)
        mn = parts[0]; self.mn = mn
        rest = parts[1] if len(parts) > 1 else ""
        ops = []
        depth = 0; cur = ""
        for chh in rest:
            if chh == "[": depth += 1
            if chh == "]": depth -= 1
            if chh == "," and depth == 0:
                ops.append(cur.strip()); cur = ""
            else:
                cur += chh
        if cur.strip(): ops.append(cur.strip())
        mods = ""
        if ops:
            sp = ops[-1].split(None, 1)
            ops[-1] = sp[0]
            mods = sp[1] if len(sp) > 1 else ""
        self.ops = ops; self.mods = mods
        R = [regs_of(o) for o in ops]
        if mn == "s_nop":
            self.kind = "nop"; self.states = int(ops[0], 0) + 1
        elif mn.startswith("v_mfma"):
            self.kind = "mfma"
            self.passes = 8 if "32x32" in mn else 4
            self.w = R[0]; self.srcAB = R[1] | R[2]; self.srcC = R[3]; self.r = self.srcAB | self.srcC
        elif mn.startswith("v_"):
            self.kind = "valu"
            self.dpp = mn.endswith("_dpp")
            self.trans = any(mn.startswith(x) for x in TRANS)
            self.perm = mn.startswith("v_permlane")
            self.rl = mn.startswith("v_readfirstlane") or mn.startswith("v_readlane")
            if self.perm:
                self.w = R[0] | R[1]; self.r = R[0] | R[1]
            else:
                self.w = set(R[0])
                for x in R[1:]: self.r |= x
                if self.dpp or mn.startswith("v_fmac") or mn.startswith("v_writelane"):
                    self.r |= R[0]
                if mn.startswith("v_add_co") or mn.startswith("v_addc_co") or mn.startswith("v_sub_co"):
                    self.w |= R[1]
        elif mn.startswith("buffer_") or mn.startswith("global_"):
            self.kind = "vmem"
            self.lds = " lds" in (" " + mods) or "_lds_" in mn
            isload = "_load" in mn
            if mn.startswith("buffer_"):
                if isload and not self.lds:
                    self.w = R[0]
                    for x in R[1:]: self.r |= x
                else:
                    for x in R: self.r |= x
                    if ("dwordx4" in mn or "dwordx3" in mn) and not isload:
                        self.wide_store = R[0]
            else:
                if isload and not self.lds:
                    self.w = R[0]
                    for x in R[1:]: self.r |= x
                elif "atomic" in mn and "sc0" in mods:
                    self.w = R[0]
                    for x in R[1:]: self.r |= x
                else:
                    for x in R: self.r |= x
                    if ("dwordx4" in mn or "dwordx3" in mn) and not isload:
                        self.wide_store = R[1]
        elif mn.startswith("ds_"):
            self.kind = "ds"
            if mn.startswith("ds_read") or mn.startswith("ds_bpermute") or mn.startswith("ds_permute") or mn.startswith("ds_swizzle"):
                self.w = R[0]
                for x in R[1:]: self.r |= x
            else:
                for x in R: self.r |= x
        elif mn.startswith("s_"):
            self.kind = "salu"
            if mn.startswith("s_cmp") or mn.startswith("s_cbranch") or mn in ("s_branch", "s_waitcnt", "s_barrier", "s_endpgm", "s_setprio", "s_sleep"):
                for x in R: self.r |= x
            else:
                if R: self.w = set(R[0])
                for x in R[1:]: self.r |= x
        else:
            raise ValueError("unknown instruction: " + text)


def need(p, c):
    n = 0
    vw = {x for x in p.w if x[0] == "v"}
    sw = {x for x in p.w if x[0] == "s"}
    if p.kind == "valu":
        if c.kind == "valu":
            if c.dpp and vw & c.r: n = max(n, 2)
            if c.perm and vw & c.r: n = max(n, 2)
            if c.rl and vw & c.r: n = max(n, 1)
            if p.trans and vw & c.r: n = max(n, 1)
            if sw & c.r: n = max(n, 4 if c.rl else 2)
        if c.kind == "mfma" and vw & c.r: n = max(n, 2)
        if c.kind == "vmem" and sw & c.r: n = max(n, 5)
    if p.kind == "mfma":
        big = 12 if p.passes == 8 else 8
        if c.kind == "valu":
            if vw & (c.r | c.w): n = max(n, big)
            if p.srcC & c.w: n = max(n, 7 if p.passes == 8 else 3)
        if c.kind in ("vmem", "ds"):
            if vw & (c.r | c.w): n = max(n, big)
        if c.kind == "mfma":
            if vw & c.srcAB: n = max(n, big)
            if vw & c.srcC:
                if not (p.w == c.srcC and p.passes == c.passes): n = max(n, 10 if p.passes == 8 else 6)
            elif vw & c.w:
                n = max(n, big)
    if p.kind == "salu" and ("s", "m0") in p.w and c.kind == "vmem" and c.lds: n = max(n, 1)
    if p.wide_store and c.w & p.wide_store:
        n = max(n, 2 if c.kind in ("valu", "mfma") else 1)
    return n


def sig(h):
    d = 0; o = []
    for p in reversed(h):
        if d >= 20: break
        if p.kind in ("valu", "mfma") or p.wide_store or ("s", "m0") in p.w: o.append((d, id(p)))
        d += p.states
    return tuple(o)


def dedupe(alt):
    seen = set(); o = []
    for a in alt:
        k = sig(a[0])
        if k and k not in seen:
            seen.add(k); o.append(a)
    return o


class Asm:
    def __init__(self):
        self.lines = []

    def __call__(self, s):
        for ln in s.split("\n"):
            ln = ln.strip()
            if ln:
                self.lines.append(ln)

    def finish(self):
        ins = [Ins(l) if not l.startswith(";") else None for l in self.lines]
        out = []
        hist = []
        branch_hist = {}
        for pass_ in range(3):
            out = []; hist = []
            npad = 0
            alt = []
            for l, x in zip(self.lines, ins):
                if x is None:
                    out.append(l); continue
                if x.label:
                    name = x.text.split(";")[0].strip()[:-1]
                    for h in branch_hist.get(name, []):
                        alt.append([list(h), 0])
                    out.append(l); continue
                if x.directive or x.states == 0:
                    out.append(l); continue
                req = 0
                for h in [hist] + [a[0] for a in alt]:
                    dist = 0
                    for p in reversed(h):
                        if dist >= 20: break
                        k = need(p, x)
                        if k > dist: req = max(req, k - dist)
                        dist += p.states
                if req > 0:
                    nop = Ins(f"s_nop {req-1}")
                    out.append(f"s_nop {req-1}"); hist.append(nop)
                    for a in alt: a[0].append(nop); a[1] += req
                    npad += 1
                out.append(l); hist.append(x)
                for a in alt: a[0].append(x); a[1] += x.states
                alt = dedupe([a for a in alt if a[1] < 21])
                if x.kind == "salu" and (x.mn.startswith("s_cbranch") or x.mn == "s_branch"):
                    tgt = x.ops[0]
                    if pass_ < 2:
                        branch_hist.setdefault(tgt, [])
                        branch_hist[tgt].append(hist[-24:])
                        for a in alt: branch_hist[tgt].append(a[0][-24:])
                        branch_hist[tgt] = [a[0] for a in dedupe([[h, 0] for h in branch_hist[tgt]])]
                if x.kind == "salu" and x.mn in ("s_branch", "s_endpgm"):
                    hist = []; alt = []
        self.npad = npad
        return "\n".join(out) + "\n"
```

```python
import sys, struct, os
sys.path.insert(0, os.path.dirname(os.path.abspath(__file__)))
from asmlib import Asm

NAME = "adaLN_cond__gqa_block_cached__dense_activation_relu__decode_kernel"
HDR = open(os.path.join(os.path.dirname(os.path.abspath(__file__)), "hdr.txt")).read()


def fhex(x):
    return "0x%08x" % struct.unpack("<I", struct.pack("<f", x))[0]


LOG2E = 1.4426950408889634
MODA_OFF = 0x0
MOD2_OFF = 0x1C00
Q_OFF = 0x5400
WGA = 48
CLR_BASE = 0x10000
ST_OFF = 0x10000
AP_OFF = 0x18000
OP_OFF = 0x26000
YP_OFF = 0xA6000
CLR_PER = 16 * 1024
STAMP_OFF = 0x8000000
L_WO = 0x0
L_W1 = 0x10000
L_W2 = 0x17000
L_MW = 0x17000
L_QW = 0x0
L_DUMMY = 0x1C000
L_RED = 0x1E000
L_WM = 0x21800
L_GA = L_WM
L_XR = L_WM + 1792
L_CB = L_WM + 2 * 1792
L_SB = L_WM + 3 * 1792
L_GB = L_WM + 4 * 1792
L_X1 = L_WM + 5 * 1792
L_S = 0x25000
L_Q = 0x25E00
L_STAT = 0x26200
L_LNS = 0x26240
L_H2 = 0x26280
L_RED2 = 0x26600
L_RED3 = 0x26E00
LDS_SIZE = 0x27400
M4 = "0x000f000f"
M8 = "0x00ff00ff"


class VM:
    nlab = 0
    def __init__(self, A):
        self.A = A; self.ops = []; self.done = 0

    def issue(self, name, text, cond=False):
        self.A(text); self.ops.append((name, cond))

    def younger(self, idx):
        return sum(1 for (n, c) in self.ops[idx + 1:] if not c)

    def wait_for(self, name):
        idx = max(k for k, (n, c) in enumerate(self.ops) if n == name)
        if idx < self.done: return
        n = min(self.younger(idx), 63)
        self.A(f"s_waitcnt vmcnt({n})"); self.done = idx + 1

    def throttle(self, d, dr=None):
        if dr is None or dr == d:
            if len(self.ops) - self.done > d - 1:
                self.A(f"s_waitcnt vmcnt({d-1})"); self.done = len(self.ops) - (d - 1)
            return
        if len(self.ops) - self.done > d - 1:
            VM.nlab += 1
            self.A(f"s_cbranch_vccnz L_th{VM.nlab}"); self.A(f"s_waitcnt vmcnt({d-1})"); self.A(f"L_th{VM.nlab}:")
        if len(self.ops) - self.done > dr - 1:
            self.A(f"s_waitcnt vmcnt({dr-1})"); self.done = len(self.ops) - (dr - 1)

    def note(self, name, cond=False):
        self.ops.append((name, cond))

    def drain(self):
        self.A("s_waitcnt vmcnt(0)"); self.done = len(self.ops)


def gen(E=12, D=4, X=28, NQ=4, ws=(8, 46, 54, 64), pvrate=3, stamps=False, wpol="nt", qpol="nt", prefetch=True, budget=200000, D2=None, DR=6, DR2=None):
    A = Asm()
    NPRE = 3
    if D2 is None: D2 = D
    if DR2 is None: DR2 = max(DR, D2)
    NU = 37

    def stamp(k):
        if stamps: A(f"s_memrealtime s[{80+2*k}:{81+2*k}]")

    def setexec(lo, hi=None):
        if hi is None: hi = lo
        if lo == hi == -1: A("s_mov_b64 exec, -1"); return
        A(f"s_mov_b32 exec_lo, {lo}"); A(f"s_mov_b32 exec_hi, {hi}")

    def srd(d, lo, hi, off, nrec):
        if off is None:
            A(f"s_mov_b32 s{d}, s{lo}"); A(f"s_and_b32 s{d+1}, s{hi}, 0xffff")
        else:
            A(f"s_add_u32 s{d}, s{lo}, {off}"); A(f"s_addc_u32 s{d+1}, s{hi}, 0"); A(f"s_and_b32 s{d+1}, s{d+1}, 0xffff")
        A(f"s_mov_b32 s{d+2}, {nrec}"); A(f"s_mov_b32 s{d+3}, 0x20000")

    def dppop(op, d, a, b, ctrl, rm="0xf", bm="0xf"):
        A(f"{op}_dpp {d}, {a}, {b} {ctrl} row_mask:{rm} bank_mask:{bm}")

    def allreduce(op, regs, tmps, rors=(8, 4, 2, 1), s16=True, s32=True):
        for n in rors:
            for r in regs: dppop(op, r, r, r, f"row_ror:{n}")
        for (flag, sw) in ((s16, "v_permlane16_swap_b32"), (s32, "v_permlane32_swap_b32")):
            if not flag: continue
            for r, t in zip(regs, tmps): A(f"v_mov_b32 {t}, {r}")
            for r, t in zip(regs, tmps): A(f"{sw} {r}, {t}")
            for r, t in zip(regs, tmps): A(f"{op} {r}, {r}, {t}")

    def rnd(r):
        A(f"v_cvt_pk_bf16_f32 {r}, {r}, {r}"); A(f"v_lshlrev_b32 {r}, 16, {r}")

    def rndn(rs):
        for r in rs: A(f"v_cvt_pk_bf16_f32 {r}, {r}, {r}")
        for r in rs: A(f"v_lshlrev_b32 {r}, 16, {r}")

    def check_valid(regs, tmp, loop, done):
        regs = list(regs)
        if len(regs) == 1:
            t = regs[0]
        else:
            A(f"v_max3_u32 {tmp}, {regs[0]}, {regs[1]}, {regs[2]}" if len(regs) > 2 else f"v_max_u32 {tmp}, {regs[0]}, {regs[1]}")
            rest = regs[3:]
            while rest:
                if len(rest) >= 2:
                    A(f"v_max3_u32 {tmp}, {tmp}, {rest[0]}, {rest[1]}"); rest = rest[2:]
                else:
                    A(f"v_max_u32 {tmp}, {tmp}, {rest[0]}"); rest = rest[1:]
            t = tmp
        A(f"v_cmp_eq_u32 vcc, -1, {t}")
        A(f"s_cbranch_vccz {done}")
        A("s_sub_u32 s66, s66, 1"); A(f"s_cbranch_scc0 {loop}")
        A("s_mov_b32 s66, 0")

    def vr(a, n=4):
        return f"v[{a}:{a+n-1}]"

    A(f"{NAME}:")
    A("s_cmp_ge_u32 s2, 256"); A("s_cbranch_scc1 L_end")
    if stamps:
        A("s_memrealtime s[80:81]")
    A("s_load_dwordx16 s[16:31], s[0:1], 0")
    A("s_load_dwordx8 s[32:39], s[0:1], 64")
    A("s_load_dwordx2 s[40:41], s[0:1], 96")
    A("v_lshrrev_b32 v1, 6, v0"); A("v_and_b32 v0, 63, v0"); A("v_readfirstlane_b32 s3, v1")
    A("s_and_b32 s4, s2, 7"); A("s_lshr_b32 s5, s2, 3"); A("s_and_b32 s6, s5, 3"); A("s_lshr_b32 s7, s5, 2")
    A(f"s_mov_b32 s66, {budget}")
    A("v_lshrrev_b32 v3, 4, v0"); A("v_lshlrev_b32 v3, 7, v3")
    A("v_bfe_u32 v4, v0, 3, 1"); A("v_lshl_add_u32 v3, v4, 9, v3")
    A("v_and_b32 v4, 7, v0"); A("v_lshl_add_u32 v1, v4, 4, v3")
    A("v_lshlrev_b32 v2, 4, v0")
    A("s_lshl_b32 s9, s4, 2"); A("s_add_u32 s9, s9, s6")
    A("s_mul_i32 s10, s4, 7"); A("s_add_u32 s10, s10, s7")
    A("s_cmp_eq_u32 s3, 7"); A("s_cbranch_scc1 L_service")

    def tail_setup():
        A("s_lshl_b32 s11, s3, 13")
        A("v_lshrrev_b32 v153, 4, v0")
        A("v_bfe_u32 v154, v0, 2, 2")
        A("v_and_b32 v155, 3, v0")
        A("v_lshrrev_b32 v129, 1, v154"); A("v_and_b32 v128, 1, v153"); A("v_lshl_or_b32 v129, v128, 1, v129")
        A("v_lshl_add_u32 v127, v153, 3, v154")
        A("v_lshlrev_b32 v126, 7, v127"); A("v_lshl_add_u32 v126, v155, 3, v126"); A("v_add_u32 v149, s11, v126")
        for m in range(4):
            A(f"v_xor_b32 v150, {m}, v129"); A(f"v_lshl_add_u32 v{124+m if m != 3 else 151}, v150, 5, v149")
        A("s_lshl_b32 s11, s3, 12"); A(f"s_add_u32 s12, s11, {L_W1}")
        A("v_lshlrev_b32 v150, 6, v127"); A("v_lshl_add_u32 v150, v155, 3, v150"); A("v_add_u32 v150, s12, v150")
        A("v_mov_b32 v127, v151")
        A("v_xor_b32 v129, 1, v128"); A("v_lshl_add_u32 v129, v129, 5, v150"); A("v_lshl_add_u32 v128, v128, 5, v150")
        A("s_lshl_b32 s12, s3, 11"); A(f"s_add_u32 s12, s12, {L_RED}")
        A("v_and_b32 v150, 31, v0"); A("v_lshlrev_b32 v150, 5, v150"); A("v_lshrrev_b32 v151, 5, v0")
        A("v_lshl_add_u32 v150, v151, 4, v150"); A("v_add_u32 v133, s12, v150")
        A("s_lshl_b32 s12, s3, 8")
        A("v_and_b32 v150, 15, v0"); A("v_lshlrev_b32 v150, 4, v150"); A("v_add_u32 v150, s12, v150")
        A(f"v_add_u32 v134, {L_RED}, v150")
        A("s_lshl_b32 s13, s9, 14"); A(f"s_add_u32 s13, s13, {OP_OFF}")
        A("s_lshl_b32 s14, s7, 11"); A("s_add_u32 s14, s14, s13"); A("v_add_u32 v135, s14, v150")
        A("s_add_u32 s13, s13, s12")
        A("v_and_b32 v150, 7, v0"); A("v_lshrrev_b32 v151, 3, v0")
        A("v_lshlrev_b32 v152, 11, v150"); A("v_lshl_add_u32 v152, v151, 4, v152"); A("v_add_u32 v136, s13, v152")
        A(f"s_add_u32 s13, s12, {L_RED2}"); A("v_lshlrev_b32 v152, 4, v153"); A("v_add_u32 v137, s13, v152")
        A("v_and_b32 v138, 15, v0"); A("v_lshlrev_b32 v138, 4, v138")
        A("s_lshl_b32 s13, s6, 3"); A("s_add_u32 s14, s13, s4"); A("s_mul_i32 s14, s14, 1792")
        A("s_lshl_b32 s15, s7, 8"); A("s_add_u32 s14, s14, s15"); A(f"s_add_u32 s14, s14, {AP_OFF}")
        A("v_add_u32 v139, s14, v138"); A(f"v_add_u32 v138, {L_RED2}, v138")
        A("s_mul_i32 s13, s13, 1792"); A("s_add_u32 s13, s13, s12"); A(f"s_add_u32 s13, s13, {AP_OFF}")
        A("v_mul_u32_u24 v140, 1792, v151"); A("v_lshl_add_u32 v140, v150, 4, v140"); A("v_add_u32 v140, s13, v140")
        A("v_lshrrev_b32 v152, 5, v0"); A("v_lshlrev_b32 v152, 5, v152"); A("v_lshl_add_u32 v152, v150, 2, v152")
        A("v_bfe_u32 v151, v0, 4, 1"); A("v_lshl_add_u32 v152, v151, 1, v152")
        A("v_bfe_u32 v151, v0, 3, 1"); A("v_add_u32 v152, v151, v152")
        A("v_lshlrev_b32 v141, 2, v152"); A("v_add_u32 v141, s12, v141")
        A("s_lshl_b32 s13, s3, 7"); A(f"s_add_u32 s13, s13, {L_H2}")
        A("v_lshlrev_b32 v142, 1, v152"); A("v_add_u32 v142, s13, v142")
        A("v_lshlrev_b32 v152, 4, v153"); A("v_add_u32 v143, s13, v152")
        A("s_mul_i32 s13, s3, 144"); A(f"s_add_u32 s13, s13, {L_RED3}"); A("v_add_u32 v144, s13, v152")
        A("v_mul_u32_u24 v145, 144, v150"); A("v_lshl_add_u32 v145, v153, 5, v145"); A(f"v_add_u32 v145, {L_RED3}, v145")
        A("s_mul_i32 s13, s6, 28"); A("s_lshl_b32 s14, s3, 2"); A("s_add_u32 s14, s14, s13"); A("s_mul_i32 s14, s14, 56")
        A("s_add_u32 s14, s14, s10"); A("s_lshl_b32 s14, s14, 6"); A(f"s_add_u32 s14, s14, {YP_OFF}")
        A("v_add_u32 v146, s14, v152"); A("v_add_u32 v149, 3584, v146"); A("v_add_u32 v150, 7168, v146"); A("v_add_u32 v151, 10752, v146")
        A("s_add_u32 s13, s13, s10"); A("s_mul_i32 s13, s13, 3584"); A(f"s_add_u32 s13, s13, {YP_OFF}")
        A("v_add_u32 v147, s13, v2")
        A("v_lshlrev_b32 v148, 2, v155"); A("v_lshrrev_b32 v152, 5, v0"); A("v_lshl_add_u32 v148, v152, 1, v148")
        A("v_bfe_u32 v152, v0, 4, 1"); A("v_add_u32 v148, v152, v148"); A("s_lshl_b32 s13, s10, 4"); A("v_add_u32 v148, s13, v148")
        A(f"s_sub_u32 s13, {L_W2}, s11")
        for m in range(4): A(f"v_add_u32 v{152+m}, s13, v{124+m}")

    def slice_voff(stride, ve, vo, tmp):
        A(f"v_lshrrev_b32 {ve}, 3, v0"); A(f"v_mul_u32_u24 {tmp}, {stride}, {ve}")
        A(f"v_and_b32 {ve}, 2, {ve}"); A(f"v_and_b32 {vo}, 7, v0"); A(f"v_xor_b32 {ve}, {ve}, {vo}")
        A(f"v_xor_b32 {vo}, 4, {ve}")
        A(f"v_lshl_add_u32 {ve}, {ve}, 4, {tmp}"); A(f"v_lshl_add_u32 {vo}, {vo}, 4, {tmp}")

    def wdma_setup():
        A("s_cmp_lt_u32 s7, 7"); A("s_cselect_b32 s67, 57344, 0"); A(f"s_cselect_b32 s68, {63*3584+64}, 0")
        A("s_lshl_b32 s12, s4, 9"); A("s_lshl_b32 s13, s3, 6"); A("s_add_u32 s12, s12, s13"); A("s_mul_i32 s12, s12, 896")
        A("s_lshl_b32 s13, s7, 7"); A("s_add_u32 s12, s12, s13")
        srd(52, 24, 25, "s12", "s67")
        A("s_mul_i32 s12, s3, 229376"); A("s_lshl_b32 s13, s10, 6"); A("s_add_u32 s12, s12, s13")
        srd(56, 28, 29, "s12", "s68")
        A("s_mul_i32 s12, s10, 28672"); A("s_lshl_b32 s13, s3, 7"); A("s_add_u32 s12, s12, s13")
        A("s_cmp_lt_u32 s7, 7"); A(f"s_cselect_b32 s67, {31*896+128}, 0")
        srd(60, 30, 31, "s12", "s67")
        A("s_lshl_b32 s42, s3, 13"); A("s_lshl_b32 s12, s3, 12")
        A(f"s_add_u32 s43, s12, {L_W1}"); A(f"s_add_u32 s64, s12, {L_W2}")
        A("s_cmp_lt_u32 s7, 7")
        A(f"s_cselect_b32 s42, s42, {L_DUMMY}"); A(f"s_cselect_b32 s43, s43, {L_DUMMY}"); A(f"s_cselect_b32 s64, s64, {L_DUMMY}")
        slice_voff(896, "v253", "v252", "v248")
        A("v_lshrrev_b32 v254, 2, v0"); A("v_mul_u32_u24 v254, 3584, v254")
        A("v_lshrrev_b32 v248, 4, v0"); A("v_and_b32 v248, 2, v248"); A("v_and_b32 v249, 3, v0"); A("v_xor_b32 v248, v248, v249")
        A("v_lshl_add_u32 v254, v248, 4, v254")

    def wdma(vm, k):
        if k < 8:
            n = k; sr = "s[52:55]"; vo = "v253" if n % 2 == 0 else "v252"; so = n * 7168; mb = "s42"
        elif k < 12:
            n = k - 8; sr = "s[56:59]"; vo = "v254"; so = n * 57344; mb = "s43"
        else:
            n = k - 12; sr = "s[60:63]"; vo = "v253" if n % 2 == 0 else "v252"; so = n * 7168; mb = "s64"
        A(f"s_add_u32 m0, {mb}, {n*1024}")
        A(f"s_mov_b32 s69, {so}")
        vm.issue(f"W{k}", f"buffer_load_dwordx4 {vo}, {sr}, s69 offen {wpol} lds")

    vm = VM(A)
    A("s_lshl_b32 s11, s6, 3"); A("s_add_u32 s11, s11, s4"); A("s_lshl_b32 s11, s11, 21")
    A("s_lshl_b32 s12, s7, 18"); A("s_add_u32 s11, s11, s12")
    A("s_lshl_b32 s8, s3, 10")
    A("s_waitcnt lgkmcnt(0)")
    if stamps:
        for k in range(1, 8): A(f"s_mov_b64 s[{80+2*k}:{81+2*k}], s[80:81]")
    srd(44, 18, 19, "s11", "0x40000")
    A("s_sub_u32 s12, s2, 42"); A("s_cmp_lt_u32 s12, 182"); A("s_cselect_b64 s[96:97], 0, -1")
    A("s_cbranch_scc0 L_slice")
    A(f"s_cmp_eq_u32 s2, {WGA}"); A("s_cbranch_scc1 L_clra")
    A("L_slice_done:")

    def kreg(i): return 8 + 4 * i
    def vreg(n): return 156 + 4 * n if n < 12 else 8 + 4 * (n - 12)
    after = {}
    for k in range(16):
        u = round(ws[0] + (ws[1] - ws[0]) * k / 11) if k < 12 else round(ws[2] + (ws[3] - ws[2]) * (k - 12) / 3)
        assert u >= D and (k < 12 or u >= NU + E) and u < 2 * NU
        after.setdefault(u, []).append(k)

    def loadK(i):
        if i > 0: A("s_add_u32 s8, s8, 7168")
        vm.issue(f"K{i}", f"buffer_load_dwordx4 {vr(kreg(i))}, v1, s[44:47], s8 offen nt")

    def loadV(n):
        if n == 0: A("s_lshl_b32 s8, s3, 10")
        else: A("s_add_u32 s8, s8, 7168")
        vm.issue(f"V{n}", f"buffer_load_dwordx4 {vr(vreg(n))}, v2, s[48:51], s8 offen nt")

    for i in range(NU):
        vm.throttle(D, DR); loadK(i)
        if i == D - 1:
            srd(48, 20, 21, "s11", "0x40000")
            A("v_and_b32 v4, 1, v0"); A("v_mov_b32 v5, 0xffff"); A("v_lshlrev_b32 v4, 4, v4"); A("v_lshlrev_b32 v5, v4, v5")
            A("v_bfe_u32 v4, v0, 1, 3")
            for r in range(4):
                A(f"v_cmp_eq_u32 vcc, {r}, v4"); A(f"v_cndmask_b32 v{208+r}, 0, v5, vcc")
            for r in range(4):
                A(f"s_mov_b32 s{70+2*r}, {hex(0x11111111 << r)}"); A(f"s_mov_b32 s{71+2*r}, {hex(0x11111111 << r)}")
            A("s_cmp_lt_u32 s3, 4"); A("s_cselect_b64 s[78:79], s[72:73], 0")
            A("v_mov_b32 v214, 0xff800000")
            A("v_and_b32 v215, 0x27, v0"); A("v_lshrrev_b32 v4, 1, v0"); A("v_and_b32 v4, 8, v4"); A("v_or_b32 v215, v215, v4")
            A("v_lshlrev_b32 v4, 1, v0"); A("v_and_b32 v4, 16, v4"); A("v_or_b32 v215, v215, v4"); A("v_lshlrev_b32 v215, 2, v215")
            A("s_lshl_b32 s12, s9, 10"); A("s_lshl_b32 s13, s7, 7"); A("s_add_u32 s12, s12, s13")
            A("s_lshl_b32 s13, s3, 4"); A("s_add_u32 s12, s12, s13"); A(f"s_add_u32 s12, s12, {ST_OFF}")
            A("v_bfe_u32 v4, v0, 4, 1"); A("v_lshlrev_b32 v4, 3, v4"); A("v_add_u32 v3, s12, v4")
            A(f"v_add_u32 v5, {L_STAT}, v4")
            A(f"v_add_u32 v6, {L_Q}, v2")
            wdma_setup()
            A("s_mov_b64 vcc, s[96:97]")
            A("s_cbranch_vccz L_nob0"); A(f"s_waitcnt vmcnt({D})"); A("s_barrier"); A("L_nob0:")
        for k in after.get(i, []):
            vm.throttle(D, DR); wdma(vm, k)
    stamp(1)
    for n in range(E):
        vm.throttle(D, DR); loadV(n)
        for k in after.get(NU + n, []):
            vm.throttle(D, DR); wdma(vm, k)
    vm.wait_for(f"K{NU-1}")
    stamp(2)
    A("s_barrier")
    A("ds_read_b128 v[204:207], v6"); A("s_waitcnt lgkmcnt(0)")
    stamp(3)

    def qk_mfma(G):
        for j in range(4):
            u = 4 * G + j
            if u < NU:
                d = 216 + 16 * (G & 1) + 4 * j
                A(f"v_mfma_f32_16x16x32_bf16 {vr(d)}, {vr(kreg(u))}, v[204:207], 0")

    def qk_extract(G):
        r = G & 3; a = 212 + (G >> 2)
        js = [j for j in range(4) if 4 * G + j < NU]
        others = [q for q in range(4) if q != r]
        for step, q in enumerate(others):
            for j in js:
                d = 216 + 16 * (G & 1) + 4 * j
                dppop("v_add_f32", f"v{248+j}", f"v{d+q}", f"v{d+r}" if step == 0 else f"v{248+j}", f"quad_perm:[{q},{q},{q},{q}]")
        A("v_permlane16_swap_b32 v248, v249")
        if len(js) > 2: A("v_permlane16_swap_b32 v250, v251")
        if len(js) == 4:
            A(f"s_mov_b64 exec, s[{70+2*r}:{71+2*r}]")
            dppop("v_add_f32", f"v{a}", "v249", "v248", "row_shl:4", bm="0x5")
            dppop("v_add_f32", f"v{a}", "v250", "v251", "row_shr:4", bm="0xa")
        else:
            assert len(js) == 1 and r == 1
            A("s_mov_b64 exec, s[78:79]")
            dppop("v_add_f32", f"v{a}", "v249", "v248", "row_shl:4", rm="0x5", bm="0x5")
        A("s_mov_b64 exec, -1")

    nextV = E
    qk_mfma(0)
    for G in range(10):
        if G + 1 < 10: qk_mfma(G + 1)
        qk_extract(G)
        if (G % 2 == 1 or NQ > 5) and nextV < E + NQ:
            assert nextV - 12 <= 4 * G + 3
            loadV(nextV)
            for k in after.get(NU + nextV, []): wdma(vm, k)
            nextV += 1
    assert nextV == E + NQ
    for a in range(3): A(f"ds_bpermute_b32 v{212+a}, v215, v{212+a}")
    A(f"s_mov_b32 s12, {fhex(LOG2E/16)}")
    A("s_waitcnt lgkmcnt(0)")
    rndn(["v212", "v213", "v214"])
    A("v_max3_f32 v248, v212, v213, v214")
    allreduce("v_max_f32", ["v248"], ["v250"], s16=False)
    for a in range(3): A(f"v_sub_f32 v{216+a}, v{212+a}, v248")
    for a in range(3): A(f"v_mul_f32 v{216+a}, s12, v{216+a}")
    for a in range(3): A(f"v_exp_f32 v{216+a}, v{216+a}")
    A("v_add_f32 v249, v216, v217"); A("v_add_f32 v249, v249, v218")
    allreduce("v_add_f32", ["v249"], ["v250"], s16=False)
    setexec("0x00010001", 0)
    vm.issue("ST", "global_store_dwordx2 v3, v[248:249], s[40:41] sc1")
    setexec(-1)
    stamp(4)
    tail_setup()
    seq = []
    for n in range(nextV, NU):
        seq.append(("V", n))
        for k in after.get(NU + n, []): seq.append(("W", k))
    lastV = max(k for k, o in enumerate(seq) if o[0] == "V")

    def issue(o, thr=True):
        if thr: vm.throttle(D2, DR2)
        if o[0] == "V": loadV(o[1])
        else: wdma(vm, o[1])

    k = 0
    while seq[k] != ("V", X):
        issue(seq[k]); k += 1
    A("s_barrier")
    A("ds_read_b64 v[248:249], v5")
    A(f"s_mov_b32 s12, {fhex(LOG2E/16)}")
    A("s_waitcnt lgkmcnt(0)")
    stamp(5)
    for a in range(3): A(f"v_sub_f32 v{212+a}, v{212+a}, v248")
    for a in range(3): A(f"v_mul_f32 v{212+a}, s12, v{212+a}")
    for a in range(3): A(f"v_exp_f32 v{212+a}, v{212+a}")
    for a in range(3): A(f"v_mul_f32 v{212+a}, v{212+a}, v249")
    for a in range(3): A(f"v_cvt_pk_bf16_f32 v{212+a}, v{212+a}, v{212+a}")

    def pv(n):
        vm.wait_for(f"V{n}")
        u = n & 15
        pos = ((u >> 2) & 3) | (((u >> 1) & 1) << 2) | ((u & 1) << 3)
        bb = 232 + 4 * (n & 1)
        for r in range(4):
            dppop("v_and_b32", f"v{bb+r}", f"v{212+(n>>4)}", f"v{208+r}", f"row_newbcast:{pos}")
        A(f"v_mfma_f32_32x32x16_bf16 v[216:231], {vr(bb)}, {vr(vreg(n))}, {'0' if n == 0 else 'v[216:231]'}")

    pn = 0
    while k < len(seq):
        issue(seq[k], thr=(k <= lastV)); k += 1
        if k <= lastV:
            for _ in range(pvrate):
                nm = f"V{pn}"
                idx = [q for q, (a_, c_) in enumerate(vm.ops) if a_ == nm]
                if idx and idx[0] < vm.done:
                    pv(pn); pn += 1
    while pn < NU:
        pv(pn); pn += 1
    A("ds_write_b128 v133, v[216:219]"); A("ds_write_b128 v133, v[224:227] offset:1024")
    stamp(6)
    A("s_waitcnt lgkmcnt(0)")
    A("s_branch L_tail")

    def clear_a():
        A("s_mul_i32 s12, s3, 7168"); A("v_add_u32 v248, s12, v2"); A("v_add_u32 v249, 4096, v248")
        for k in range(4): A(f"v_mov_b32 v{4+k}, -1")
        for j in range(7): A(f"global_store_dwordx4 v{248 + j//4}, v[4:7], s[40:41] offset:{(j%4)*1024} sc1")
    A("L_clra:")
    clear_a()
    A("s_mov_b64 s[96:97], -1")
    A("s_branch L_slice_done")
    A("L_slice:")
    A("s_cmp_lt_u32 s2, 42"); A("s_cbranch_scc0 L_slice_q")
    A("s_lshl_b32 s12, s2, 7")
    srd(52, 34, 35, "s12", 447 * 5376 + 128)
    A("s_mov_b32 s13, 5376"); A(f"s_mov_b32 s15, {L_MW}")
    A("s_branch L_slice_go")
    A("L_slice_q:")
    A("s_lshl_b32 s12, s4, 10"); A("s_lshl_b32 s13, s6, 8"); A("s_add_u32 s12, s12, s13")
    srd(52, 22, 23, "s12", 447 * 8192 + 256)
    A("s_mov_b32 s13, 8192"); A(f"s_mov_b32 s15, {L_QW}")
    A("L_slice_go:")
    slice_voff("s13", "v253", "v252", "v248")
    A("s_lshl_b32 s12, s3, 13"); A("s_add_u32 s15, s15, s12")
    A("s_lshl_b32 s13, s13, 3"); A("s_mul_i32 s12, s13, s3"); A("s_lshl_b32 s12, s12, 3")
    A("L_slice_half:")
    A("s_mov_b32 m0, s15"); A("s_mov_b32 s69, s12")
    for n in range(8):
        if n: A("s_add_u32 m0, m0, 1024"); A("s_add_u32 s69, s69, s13")
        A(f"buffer_load_dwordx4 {'v252' if n & 1 else 'v253'}, s[52:55], s69 offen {qpol} lds")
    A("s_cmp_lt_u32 s15, 57344"); A("s_cbranch_scc0 L_slice_done")
    A("s_add_u32 s15, s15, 57344"); A("s_add_u32 s12, s12, 128")
    A("s_branch L_slice_half")

    A("L_service:")
    A("s_setprio 3")
    vm = VM(A)
    A("v_and_b32 v8, 3, v0"); A("v_lshrrev_b32 v9, 2, v0")
    A("v_mul_u32_u24 v10, 896, v8"); A("v_lshl_add_u32 v10, v9, 4, v10")
    for k in range(4): A(f"v_mov_b32 v{4+k}, -1")
    A("v_lshrrev_b32 v11, 4, v0")
    A("v_and_b32 v12, 15, v0")
    A("v_mov_b32 v17, 0"); A("v_mov_b32 v18, 1")
    A("s_cmp_lt_u32 s2, 42"); A("s_cbranch_scc1 L_mrole")
    A("s_cmp_ge_u32 s2, 224"); A("s_cbranch_scc1 L_qrole")
    A("s_waitcnt lgkmcnt(0)")

    def stamp_init():
        if stamps:
            for k in range(1, 8): A(f"s_mov_b64 s[{80+2*k}:{81+2*k}], s[80:81]")

    def wait_flag(tag, pre=False, word=32):
        if pre: A(f"s_branch L_fl{tag}_w")
        A(f"L_fl{tag}:")
        A(f"global_load_dword v99, v17, s[38:39] offset:{4*word} sc1")
        A(f"L_fl{tag}_w:")
        A("s_waitcnt vmcnt(0)")
        A("v_readfirstlane_b32 s12, v99")
        A(f"s_cmp_lg_u32 s12, 0"); A(f"s_cbranch_scc1 L_fl{tag}_done")
        A("s_sub_u32 s66, s66, 1"); A(f"s_cbranch_scc0 L_fl{tag}")
        A("s_mov_b32 s66, 0")
        A(f"L_fl{tag}_done:")

    def role_addr(base):
        A("v_bfe_u32 v13, v0, 2, 2")
        A("v_lshrrev_b32 v14, 1, v13"); A("v_and_b32 v15, 1, v11"); A("v_lshl_or_b32 v14, v15, 1, v14")
        A("v_lshl_add_u32 v13, v11, 3, v13"); A("v_lshlrev_b32 v13, 7, v13"); A("v_lshl_add_u32 v13, v8, 3, v13")
        if base: A(f"v_add_u32 v13, {base}, v13")
        for m in range(4):
            A(f"v_xor_b32 v16, {m}, v14"); A(f"v_lshl_add_u32 v{22+m}, v16, 5, v13")
        A("v_bfe_u32 v26, v0, 2, 1"); A("v_lshlrev_b32 v26, 6, v26"); A("v_lshl_add_u32 v26, v15, 5, v26")
        A("v_lshrrev_b32 v16, 1, v11"); A("v_lshl_add_u32 v26, v16, 4, v26")

    def a_reads(blk, areg, off):
        buf = 156 + 32 * (blk % 3)
        for t in range(2):
            for m in range(4):
                for hf in range(2):
                    A(f"ds_read_b64_tr_b16 {vr(buf+16*t+4*m+2*hf, 2)}, v{areg+m} offset:{off+hf*4096+t*512}")

    def b_reads():
        A("v_mul_u32_u24 v31, 896, v8"); A("v_lshl_add_u32 v31, v11, 4, v31"); A(f"v_add_u32 v31, {L_S}, v31")
        A("s_waitcnt lgkmcnt(0)")
        for kb in range(7):
            for t in range(2):
                A(f"ds_read2_b64 {vr(100+8*kb+4*t)}, v31 offset0:{16*kb+t} offset1:{16*kb+t+8}")

    def mfmas(blk, kb, acc):
        buf = 156 + 32 * (blk % 3)
        for t in range(2):
            for m in range(4):
                c = "0" if kb == 0 and t == 0 else vr(acc + 4 * m)
                A(f"v_mfma_f32_16x16x32_bf16 {vr(acc+4*m)}, {vr(buf+16*t+4*m)}, {vr(100+8*kb+4*t)}, {c}")

    def pack(acc, P, O, addone=None):
        for j in range(8): A(f"v_cvt_pk_bf16_f32 v{P+j}, v{acc+2*j}, v{acc+2*j+1}")
        if addone:
            for j in range(8):
                A(f"v_lshlrev_b32 v{acc+2*j}, 16, v{P+j}"); A(f"v_and_b32 v{acc+2*j+1}, 0xffff0000, v{P+j}")
            for j in range(16): A(f"v_add_f32 v{acc+j}, {addone}, v{acc+j}")
            for j in range(8): A(f"v_cvt_pk_bf16_f32 v{P+j}, v{acc+2*j}, v{acc+2*j+1}")
        for p in range(2):
            for j in range(2): A(f"v_permlane16_swap_b32 v{P+4*p+j}, v{P+4*p+2+j}")
        for j in range(4): A(f"v_cndmask_b32 v{O+j}, v{P+j}, v{P+4+j}, vcc")
        for j in range(4): A(f"v_min_u32 v{O+j}, -2, v{O+j}")

    stamp_init()
    A(f"s_cmp_eq_u32 s2, {WGA}"); A("s_cbranch_scc0 L_nota")
    clear_a()
    A("s_waitcnt vmcnt(0)")
    A("s_barrier")
    setexec(1, 0)
    A("global_store_dword v17, v18, s[38:39] offset:128 sc1")
    setexec(-1)
    stamp(1)
    A("s_branch L_pollq")
    A("L_nota:")
    A("s_cmp_lt_u32 s2, 64"); A("s_cbranch_scc1 L_common")
    A("s_cmp_lt_u32 s2, 128"); A("s_cbranch_scc0 L_noclr")
    A("s_sub_u32 s12, s2, 64"); A(f"s_mul_i32 s12, s12, {CLR_PER}"); A(f"s_add_u32 s12, s12, {CLR_BASE}")
    A("v_add_u32 v20, s12, v2")
    for j in range(16):
        if j % 4 == 0 and j: A("v_add_u32 v20, 4096, v20")
        A(f"global_store_dwordx4 v20, v[4:7], s[40:41] offset:{(j%4)*1024} sc1")
    A("s_waitcnt vmcnt(0)")
    setexec(1, 0)
    A("global_atomic_add v99, v17, v18, s[38:39] sc0 sc1")
    A("s_waitcnt vmcnt(0)")
    A("v_readfirstlane_b32 s12, v99")
    A("s_cmp_eq_u32 s12, 63"); A("s_cbranch_scc0 L_notlast")
    A("global_store_dword v17, v18, s[38:39] offset:132 sc1")
    A("L_notlast:")
    setexec(-1)
    stamp(1)
    A("s_branch L_common")
    A("L_noclr:")
    if prefetch:
        A(f"s_cmp_lt_u32 s2, {128 + 8*NPRE}"); A("s_cbranch_scc0 L_common")
        A("s_getpc_b64 s[64:65]"); A("L_pcb:")
        A(f"s_sub_u32 s64, s64, L_pcb-{NAME}"); A("s_subb_u32 s65, s65, 0")
        A("s_sub_u32 s12, s5, 16"); A("s_lshl_b32 s12, s12, 13")
        A("v_lshlrev_b32 v20, 7, v0"); A("v_add_u32 v20, s12, v20"); A(f"v_min_u32 v20, L_code_end-{NAME}-4, v20")
        A("global_load_dword v21, v20, s[64:65]")
    A("s_branch L_common")

    A("L_mrole:")
    vm = VM(A)
    role_addr(L_MW)
    A("s_lshl_b32 s13, s2, 7")
    A("s_mov_b32 s14, 3584"); A(f"s_mov_b32 s15, {MOD2_OFF - 14*128}")
    A("s_cmp_lt_u32 s2, 14"); A("s_cselect_b32 s14, 1792, s14"); A(f"s_cselect_b32 s15, {MODA_OFF}, s15")
    A("s_add_u32 s15, s15, s13")
    A("v_mul_lo_u32 v30, s14, v8"); A("v_add_u32 v30, v26, v30"); A("v_add_u32 v30, s15, v30")
    A("s_waitcnt lgkmcnt(0)")
    stamp_init()
    srd(44, 32, 33, None, 3584)
    for q in range(4): A(f"buffer_load_dwordx4 {vr(32+4*q)}, v10, s[44:47], 0 offen offset:{q*256}")
    A("s_waitcnt vmcnt(0)")
    stamp(1)
    A(f"s_mov_b32 s14, {fhex(-LOG2E)}")
    A(f"v_add_u32 v31, {L_S}, v10")
    for q in range(4):
        src = 32 + 4 * q
        for j in range(4):
            A(f"v_lshlrev_b32 v{64+2*j}, 16, v{src+j}"); A(f"v_and_b32 v{65+2*j}, 0xffff0000, v{src+j}")
        for j in range(8): A(f"v_mul_f32 v{72+j}, s14, v{64+j}")
        for j in range(8): A(f"v_exp_f32 v{72+j}, v{72+j}")
        for j in range(8): A(f"v_add_f32 v{72+j}, 1.0, v{72+j}")
        for j in range(8): A(f"v_rcp_f32 v{72+j}, v{72+j}")
        for j in range(8): A(f"v_mul_f32 v{72+j}, v{64+j}, v{72+j}")
        for j in range(4): A(f"v_cvt_pk_bf16_f32 v{src+j}, v{72+2*j}, v{73+2*j}")
        if q == 3: setexec(-1, 0)
        A(f"ds_write_b128 v31, {vr(src)} offset:{q*256}")
        if q == 3: setexec(-1)
    b_reads()
    A("s_sub_u32 s12, s2, 7"); A("s_cmp_lt_u32 s12, 7"); A("s_cselect_b32 s15, 1.0, 0")
    A("s_sub_u32 s12, s2, 28"); A("s_cmp_lt_u32 s12, 7"); A("s_cselect_b32 s15, 1.0, s15")
    A("v_and_b32 v16, 4, v0"); A("v_cmp_ne_u32 vcc, 0, v16")
    A("s_barrier")
    stamp(2)
    A("global_load_dword v99, v17, s[38:39] offset:128 sc1")
    for kb in range(2): a_reads(kb, 22, kb * 8192)
    for kb in range(7):
        if kb + 2 < 7: a_reads(kb + 2, 22, (kb + 2) * 8192)
        A(f"s_waitcnt lgkmcnt({15 if kb < 6 else 0})")
        mfmas(kb, kb, 32)
    pack(32, 48, 56, addone="s15")
    wait_flag("m", pre=True)
    setexec(M8)
    A("global_store_dwordx4 v30, v[56:59], s[40:41] sc1")
    setexec(-1)
    stamp(4)
    A("s_branch L_pollq")

    A("L_qrole:")
    vm = VM(A)
    role_addr(L_QW)
    A("s_lshl_b32 s12, s6, 8"); A("s_lshl_b32 s13, s4, 12"); A("s_add_u32 s13, s13, s12"); A(f"s_add_u32 s13, s13, {Q_OFF}")
    A("v_lshl_add_u32 v30, v8, 10, v26"); A("v_add_u32 v30, s13, v30")
    A("s_waitcnt lgkmcnt(0)")
    stamp_init()
    srd(48, 16, 17, None, 3584)
    for q in range(4): A(f"buffer_load_dwordx4 {vr(48+4*q)}, v10, s[48:51], 0 offen offset:{q*256}")
    A("s_waitcnt vmcnt(0)")
    stamp(1)
    for m in range(4): A(f"v_add_u32 v{12+m}, 57344, v{22+m}")
    def unpack_x():
        for j in range(16):
            A(f"v_lshlrev_b32 v{64+2*j}, 16, v{48+j}"); A(f"v_and_b32 v{65+2*j}, 0xffff0000, v{48+j}")
    unpack_x()
    A("v_add_f32 v96, v64, v65"); A("v_add_f32 v97, v66, v67")
    for j in range(4, 24, 2):
        A(f"v_add_f32 v96, v96, v{64+j}"); A(f"v_add_f32 v97, v97, v{65+j}")
    setexec(-1, 0)
    for j in range(24, 32, 2):
        A(f"v_add_f32 v96, v96, v{64+j}"); A(f"v_add_f32 v97, v97, v{65+j}")
    setexec(-1)
    A("v_add_f32 v96, v96, v97")
    allreduce("v_add_f32", ["v96"], ["v97"], rors=(4, 8))
    A(f"v_mul_f32 v96, {fhex(1/448)}, v96")
    for j in range(32): A(f"v_sub_f32 v{100+j}, v{64+j}, v96")
    A("v_mul_f32 v98, v100, v100"); A("v_mul_f32 v97, v101, v101")
    for j in range(2, 24, 2):
        A(f"v_fmac_f32 v98, v{100+j}, v{100+j}"); A(f"v_fmac_f32 v97, v{101+j}, v{101+j}")
    setexec(-1, 0)
    for j in range(24, 32, 2):
        A(f"v_fmac_f32 v98, v{100+j}, v{100+j}"); A(f"v_fmac_f32 v97, v{101+j}, v{101+j}")
    setexec(-1)
    A("v_add_f32 v98, v98, v97")
    allreduce("v_add_f32", ["v98"], ["v97"], rors=(4, 8))
    A(f"v_mul_f32 v98, {fhex(1/448)}, v98")
    rndn(["v96", "v98"])
    A(f"v_add_f32 v98, {fhex(1e-5)}, v98"); rnd("v98"); A("v_sqrt_f32 v98, v98"); rnd("v98"); A("v_rcp_f32 v98, v98")
    for j in range(32): A(f"v_sub_f32 v{64+j}, v{64+j}, v96")
    for j in range(16): A(f"v_cvt_pk_bf16_f32 v{48+j}, v{64+2*j}, v{65+2*j}")
    unpack_x()
    for j in range(32): A(f"v_mul_f32 v{64+j}, v{64+j}, v98")
    for j in range(16): A(f"v_cvt_pk_bf16_f32 v{48+j}, v{64+2*j}, v{65+2*j}")
    unpack_x()
    for j in range(4): A(f"v_mov_b32 v{44+j}, 0"); A(f"v_mov_b32 v{60+j}, 0")
    A("v_mul_u32_u24 v28, 1792, v8"); A("v_lshl_add_u32 v28, v9, 4, v28")
    A("global_load_dword v99, v17, s[38:39] offset:128 sc1")
    A("s_barrier")
    stamp(2)
    def q_tile(blk): return (22, blk * 8192) if blk < 7 else (12, (blk - 7) * 8192)
    for blk in range(3): a_reads(blk, *q_tile(blk))
    wait_flag("q", pre=True)
    A("L_pma:")
    for q in range(3):
        A(f"global_load_dwordx4 {vr(32+4*q)}, v28, s[40:41] offset:{MODA_OFF + q*256} sc1")
        A(f"global_load_dwordx4 {vr(48+4*q)}, v28, s[40:41] offset:{MODA_OFF + 896 + q*256} sc1")
    setexec(-1, 0)
    A(f"global_load_dwordx4 v[44:47], v28, s[40:41] offset:{MODA_OFF + 768} sc1")
    A(f"global_load_dwordx4 v[60:63], v28, s[40:41] offset:{MODA_OFF + 896 + 768} sc1")
    setexec(-1)
    A("s_waitcnt vmcnt(0)")
    check_valid([f"v{32+j}" for j in range(32)], "v96", "L_pma", "L_pma_done")
    A("L_pma_done:")
    stamp(4)
    A(f"v_add_u32 v31, {L_S}, v10")
    for q in range(4):
        for j in range(4):
            A(f"v_lshlrev_b32 v{100+2*j}, 16, v{48+4*q+j}"); A(f"v_and_b32 v{101+2*j}, 0xffff0000, v{48+4*q+j}")
        for j in range(8): A(f"v_mul_f32 v{100+j}, v{64+8*q+j}, v{100+j}")
        for j in range(4):
            A(f"v_lshlrev_b32 v{108+2*j}, 16, v{32+4*q+j}"); A(f"v_and_b32 v{109+2*j}, 0xffff0000, v{32+4*q+j}")
        for j in range(4): A(f"v_cvt_pk_bf16_f32 v{116+j}, v{100+2*j}, v{101+2*j}")
        for j in range(4):
            A(f"v_lshlrev_b32 v{100+2*j}, 16, v{116+j}"); A(f"v_and_b32 v{101+2*j}, 0xffff0000, v{116+j}")
        for j in range(8): A(f"v_add_f32 v{100+j}, v{100+j}, v{108+j}")
        for j in range(4): A(f"v_cvt_pk_bf16_f32 v{32+4*q+j}, v{100+2*j}, v{101+2*j}")
        if q == 3: setexec(-1, 0)
        A(f"ds_write_b128 v31, {vr(32+4*q)} offset:{q*256}")
        if q == 3: setexec(-1)
    b_reads()
    A("v_and_b32 v16, 4, v0"); A("v_cmp_ne_u32 vcc, 0, v16")
    A("s_waitcnt lgkmcnt(0)")
    for blk in range(14):
        if blk >= 3: A(f"s_waitcnt lgkmcnt({15 if blk < 13 else 0})")
        mfmas(blk, blk % 7, 32 if blk < 7 else 48)
        if blk + 3 < 14: a_reads(blk + 3, *q_tile(blk + 3))
    pack(32, 64, 72); pack(48, 64, 76)
    setexec(M8)
    A("global_store_dwordx4 v30, v[72:75], s[40:41] sc1")
    A("global_store_dwordx4 v30, v[76:79], s[40:41] offset:128 sc1")
    setexec(-1)

    A("s_branch L_pollq")
    A("L_common:")
    wait_flag("c")
    A("L_pollq:")
    stamp(3)
    A("s_lshl_b32 s12, s9, 10"); A(f"s_add_u32 s12, s12, {Q_OFF}"); A("v_add_u32 v31, s12, v1")
    A(f"v_add_u32 v30, {L_Q}, v2")
    A("L_pq:")
    A("global_load_dwordx4 v[32:35], v31, s[40:41] sc1")
    A("global_load_dword v99, v17, s[38:39] offset:132 sc1")
    A("s_waitcnt vmcnt(0)")
    check_valid(["v32", "v33", "v34", "v35"], "v36", "L_pq", "L_pq_done")
    A("L_pq_done:")
    A("ds_write_b128 v30, v[32:35]")
    wait_flag("l", pre=True, word=33)
    A("s_waitcnt lgkmcnt(0)")
    stamp(5)
    A("s_barrier")
    wdma_setup()
    vm = VM(A)
    for k in range(8): wdma(vm, k)
    A("s_mul_i32 s12, s6, 3584"); A(f"s_add_u32 s12, s12, {MOD2_OFF}"); A("v_add_u32 v31, s12, v2")
    A("s_mul_i32 s12, s6, 896"); A("v_add_u32 v30, s12, v2")
    setexec(-1, "0x00ffffff")
    A("global_load_dwordx4 v[48:51], v30, s[16:17]")
    A("L_pm:")
    for q in range(4): A(f"global_load_dwordx4 {vr(32+4*q)}, v31, s[40:41] offset:{q*896} sc1")
    A("s_waitcnt vmcnt(0)")
    check_valid([f"v{32+j}" for j in range(16)], "v52", "L_pm", "L_pm_done")
    A("L_pm_done:")
    A("v_lshlrev_b32 v30, 5, v0"); A(f"v_add_u32 v30, {L_WM}, v30")
    for (src, dst) in ((32, L_GA), (36, L_SB), (40, L_CB), (44, L_GB), (48, L_XR)):
        for j in range(4):
            A(f"v_lshlrev_b32 v{64+2*j}, 16, v{src+j}"); A(f"v_and_b32 v{65+2*j}, 0xffff0000, v{src+j}")
        A(f"ds_write_b128 v30, v[64:67] offset:{dst-L_WM}"); A(f"ds_write_b128 v30, v[68:71] offset:{dst-L_WM+16}")
        A("s_waitcnt lgkmcnt(0)")
    setexec(-1)
    A(f"v_lshlrev_b32 v30, 2, v0"); A(f"v_add_u32 v30, {L_RED3 + 7*144}, v30")
    setexec(-1, 0)
    A("ds_write_b32 v30, v17")
    setexec(-1)
    A("s_lshl_b32 s12, s9, 10"); A(f"s_add_u32 s12, s12, {ST_OFF}"); A("v_add_u32 v31, s12, v2")
    A("v_mov_b32 v32, 0xff800000"); A("v_mov_b32 v33, 0"); A("v_mov_b32 v34, 0xff800000"); A("v_mov_b32 v35, 0")
    setexec("0x7f7f7f7f")
    A("L_ps:")
    A("global_load_dwordx4 v[32:35], v31, s[40:41] sc1")
    A("s_waitcnt vmcnt(0)")
    check_valid(["v32", "v33", "v34", "v35"], "v36", "L_ps", "L_ps_done")
    A("L_ps_done:")
    setexec(-1)
    stamp(6)
    A("v_mov_b32 v36, v32"); A("v_mov_b32 v38, v34")
    A(f"s_mov_b32 s12, {fhex(LOG2E/16)}")
    allreduce("v_max_f32", ["v36", "v38"], ["v40", "v41"])
    A("v_sub_f32 v32, v32, v36"); A("v_sub_f32 v34, v34, v38")
    A("v_mul_f32 v32, s12, v32"); A("v_mul_f32 v34, s12, v34")
    A("v_exp_f32 v32, v32"); A("v_exp_f32 v34, v34")
    A("v_mul_f32 v37, v32, v33"); A("v_mul_f32 v39, v34, v35")
    allreduce("v_add_f32", ["v37", "v39"], ["v40", "v41"])
    A("v_rcp_f32 v37, v37"); A("v_rcp_f32 v39, v39")
    A(f"v_mov_b32 v30, {L_STAT}")
    setexec(1, 0)
    A("ds_write_b128 v30, v[36:39]")
    setexec(-1)
    A("s_waitcnt lgkmcnt(0)")
    A("s_barrier")
    tail_setup()

    A("L_tail:")
    A("s_barrier")
    for p in range(7): A(f"ds_read_b128 {vr(160+4*p)}, v134 offset:{p*2048}")
    A("s_waitcnt lgkmcnt(0)")
    for j in range(4):
        A(f"v_add_f32 v{160+j}, v{160+j}, v{164+j}"); A(f"v_add_f32 v{168+j}, v{168+j}, v{172+j}"); A(f"v_add_f32 v{176+j}, v{176+j}, v{180+j}")
    for j in range(4):
        A(f"v_add_f32 v{160+j}, v{160+j}, v{168+j}"); A(f"v_add_f32 v{176+j}, v{176+j}, v{184+j}")
    for j in range(4): A(f"v_add_f32 v{160+j}, v{160+j}, v{176+j}")
    setexec("0xffff", 0)
    A("global_store_dwordx4 v135, v[160:163], s[40:41] sc1")
    setexec(-1)
    A("s_cmp_eq_u32 s7, 7"); A("s_cbranch_scc1 L_exit")
    A("global_load_dwordx4 v[164:167], v136, s[40:41] sc1")
    A("global_load_dwordx4 v[168:171], v136, s[40:41] offset:128 sc1")
    A("s_waitcnt vmcnt(3)")
    for t in range(2):
        for m in range(4):
            for hf in range(2):
                A(f"ds_read_b64_tr_b16 {vr(8+16*t+4*m+2*hf, 2)}, v{124+m} offset:{hf*4096+t*512}")
    for t in range(2):
        for m in range(2):
            for hf in range(2):
                A(f"ds_read_b64_tr_b16 {vr(40+8*t+4*m+2*hf, 2)}, v{128+m} offset:{t*2048+hf*256}")
    for m in range(4):
        for hf in range(2):
            A(f"ds_read_b64_tr_b16 {vr(56+4*m+2*hf, 2)}, v{152+m} offset:{hf*512}")
    A(f"ds_read_b32 v72, v141 offset:{L_GA - 0x20000}")
    A(f"ds_read_b32 v73, v141 offset:{L_XR - 0x20000}")
    A(f"ds_read_b32 v74, v141 offset:{L_CB - 0x20000}")
    A(f"ds_read_b32 v75, v141 offset:{L_SB - 0x20000}")
    A("s_branch L_pa_wait")
    A("L_pa:")
    A("global_load_dwordx4 v[164:167], v136, s[40:41] sc1")
    A("global_load_dwordx4 v[168:171], v136, s[40:41] offset:128 sc1")
    A("L_pa_wait:")
    A("s_waitcnt vmcnt(0)")
    check_valid([f"v{164+j}" for j in range(8)], "v172", "L_pa", "L_pa_done")
    A("L_pa_done:")
    for ctrl in ("quad_perm:[1,0,3,2]", "quad_perm:[2,3,0,1]", "row_half_mirror"):
        for j in range(8): dppop("v_add_f32", f"v{164+j}", f"v{164+j}", f"v{164+j}", ctrl)
    for j in range(4): A(f"v_cvt_pk_bf16_f32 v{172+j}, v{164+2*j}, v{165+2*j}")
    for j in range(4): A(f"v_mov_b32_dpp v{176+j}, v{172+j} row_ror:8 row_mask:0xf bank_mask:0xf")
    A("s_waitcnt lgkmcnt(0)")
    for m in range(4): A(f"v_mfma_f32_16x16x32_bf16 {vr(180+4*m)}, {vr(8+4*m)}, v[172:175], 0")
    for m in range(4): A(f"v_mfma_f32_16x16x32_bf16 {vr(180+4*m)}, {vr(24+4*m)}, v[176:179], {vr(180+4*m)}")
    setexec("0x00010001")
    for m in range(4): A(f"ds_write_b128 v137, {vr(180+4*m)} offset:{m*64}")
    setexec(-1)
    A("s_waitcnt lgkmcnt(0)")
    A("s_barrier")
    A("s_cmp_eq_u32 s3, 7"); A("s_cbranch_scc1 L_w7")
    A("L_pb:")
    A("global_load_dwordx4 v[164:167], v140, s[40:41] sc1")
    A("global_load_dwordx4 v[168:171], v140, s[40:41] offset:128 sc1")
    A("s_waitcnt vmcnt(0)")
    check_valid([f"v{164+j}" for j in range(8)], "v172", "L_pb", "L_pb_done")
    A("L_pb_done:")
    if stamps:
        A("s_memrealtime s[94:95]")
    for j in range(4): A(f"v_permlane32_swap_b32 v{164+j}, v{168+j}")
    for j in range(4): A(f"v_add_f32 v{164+j}, v{164+j}, v{168+j}")
    A("v_permlane16_swap_b32 v164, v166"); A("v_permlane16_swap_b32 v165, v167")
    A("v_add_f32 v164, v164, v166"); A("v_add_f32 v165, v165, v167")
    dppop("v_add_f32", "v168", "v164", "v164", "row_ror:8", bm="0x3")
    dppop("v_add_f32", "v168", "v165", "v165", "row_ror:8", bm="0xc")
    rnd("v168"); A("v_mul_f32 v168, v72, v168"); rnd("v168"); A("v_add_f32 v168, v73, v168"); rnd("v168")
    A("v_readfirstlane_b32 s12, v168")
    A(f"ds_write_b32 v141, v168 offset:{L_X1 - 0x20000}")
    A("v_subrev_f32 v169, s12, v168"); A("v_mul_f32 v170, v169, v169")
    allreduce("v_add_f32", ["v169", "v170"], ["v171", "v172"])
    A(f"v_mul_f32 v171, {fhex(1/64)}, v169")
    A("v_fma_f32 v173, -v171, v169, v170"); A("v_add_f32 v172, s12, v171")
    A("s_lshl_b32 s12, s3, 3"); A(f"s_add_u32 s12, s12, {L_LNS}"); A("v_mov_b32 v174, s12")
    setexec(1, 0)
    A("ds_write_b64 v174, v[172:173]")
    setexec(-1)
    A(f"v_mov_b32 v174, {L_LNS}")
    A("s_waitcnt lgkmcnt(0)")
    A("s_barrier")
    for q in range(3): A(f"ds_read_b128 {vr(176+4*q)}, v174 offset:{q*16}")
    A("ds_read_b64 v[188:189], v174 offset:48")
    A("s_waitcnt lgkmcnt(0)")
    A("v_add_f32 v190, v176, v178"); A("v_add_f32 v191, v180, v182"); A("v_add_f32 v192, v184, v186")
    A("v_add_f32 v193, v177, v179"); A("v_add_f32 v194, v181, v183"); A("v_add_f32 v195, v185, v187")
    A("v_add_f32 v190, v190, v191"); A("v_add_f32 v192, v192, v188"); A("v_add_f32 v193, v193, v194"); A("v_add_f32 v195, v195, v189")
    A("v_add_f32 v190, v190, v192"); A("v_add_f32 v193, v193, v195")
    A(f"v_mul_f32 v190, {fhex(1/7)}, v190")
    for j in range(7): A(f"v_sub_f32 v{176+2*j}, v{176+2*j}, v190")
    A("v_mul_f32 v191, v176, v176"); A("v_mul_f32 v192, v178, v178")
    A("v_fmac_f32 v191, v180, v180"); A("v_fmac_f32 v192, v182, v182"); A("v_fmac_f32 v191, v184, v184"); A("v_fmac_f32 v192, v186, v186")
    A("v_fmac_f32 v191, v188, v188"); A("v_cvt_pk_bf16_f32 v190, v190, v190"); A("v_add_f32 v191, v191, v192")
    A("v_lshlrev_b32 v190, 16, v190")
    A(f"v_fmac_f32 v193, {fhex(64.0)}, v191")
    A("v_sub_f32 v168, v168, v190")
    A(f"v_mul_f32 v193, {fhex(1/448)}, v193")
    rndn(["v193", "v168"])
    A(f"v_add_f32 v193, {fhex(1e-5)}, v193"); rnd("v193"); A("v_sqrt_f32 v193, v193"); rnd("v193"); A("v_rcp_f32 v193, v193")
    A("v_mul_f32 v168, v168, v193"); rnd("v168"); A("v_mul_f32 v168, v168, v74"); rnd("v168"); A("v_add_f32 v168, v168, v75")
    A("v_cvt_pk_bf16_f32 v168, v168, v168")
    A("ds_write_b16 v142, v168")
    A("s_waitcnt lgkmcnt(0)")
    A("ds_read_b128 v[176:179], v143"); A("ds_read_b128 v[180:183], v143 offset:64")
    A("s_waitcnt lgkmcnt(0)")
    for m in range(2): A(f"v_mfma_f32_16x16x32_bf16 {vr(184+4*m)}, {vr(40+4*m)}, v[176:179], 0")
    for m in range(2): A(f"v_mfma_f32_16x16x32_bf16 {vr(184+4*m)}, {vr(48+4*m)}, v[180:183], {vr(184+4*m)}")
    setexec("0x00010001")
    for m in range(2): A(f"ds_write_b128 v144, {vr(184+4*m)} offset:{m*64}")
    setexec(-1)
    A("s_waitcnt lgkmcnt(0)")
    A("s_barrier")
    A("ds_read_b128 v[164:167], v145"); A("ds_read_b128 v[168:171], v145 offset:16")
    A("s_waitcnt lgkmcnt(0)")
    for ctrl in ("quad_perm:[1,0,3,2]", "quad_perm:[2,3,0,1]", "row_half_mirror"):
        for j in range(8): dppop("v_add_f32", f"v{164+j}", f"v{164+j}", f"v{164+j}", ctrl)
    for j in range(8): A(f"v_max_f32 v{164+j}, 0, v{164+j}")
    for j in range(4): A(f"v_cvt_pk_bf16_f32 v{172+j}, v{164+2*j}, v{165+2*j}")
    for m in range(4): A(f"v_mfma_f32_16x16x32_bf16 {vr(180+4*m)}, {vr(56+4*m)}, v[172:175], 0")
    setexec("0x00010001")
    for m, a in enumerate((146, 149, 150, 151)): A(f"global_store_dwordx4 v{a}, {vr(180+4*m)}, s[40:41] sc1")
    A("s_branch L_exit")
    A("L_w7:")
    for p in range(8): A(f"ds_read_b128 {vr(160+4*p)}, v138 offset:{p*256}")
    A("s_waitcnt lgkmcnt(0)")
    for j in range(4):
        for p in range(0, 8, 2): A(f"v_add_f32 v{160+4*p+j}, v{160+4*p+j}, v{164+4*p+j}")
    for j in range(4):
        A(f"v_add_f32 v{160+j}, v{160+j}, v{168+j}"); A(f"v_add_f32 v{176+j}, v{176+j}, v{184+j}")
    for j in range(4): A(f"v_add_f32 v{160+j}, v{160+j}, v{176+j}")
    setexec("0xffff", 0)
    A("global_store_dwordx4 v139, v[160:163], s[40:41] sc1")
    setexec(-1)
    A("s_cmp_ge_u32 s10, 28"); A("s_cbranch_scc1 L_exit")
    A("v_lshlrev_b32 v192, 2, v148"); A("v_add_u32 v192, 0x20000, v192")
    A("s_mul_i32 s12, s6, 448"); A("v_add_u32 v148, s12, v148"); A("v_lshlrev_b32 v148, 1, v148")
    for j in range(4): A(f"v_mov_b32 v{176+j}, 0")
    A("s_barrier")
    A(f"ds_read_b32 v193, v192 offset:{L_X1 - 0x20000}"); A(f"ds_read_b32 v194, v192 offset:{L_GB - 0x20000}")
    A("s_barrier")
    A("L_pc:")
    for q in range(3): A(f"global_load_dwordx4 {vr(164+4*q)}, v147, s[40:41] offset:{q*1024} sc1")
    setexec(-1, 0)
    A("global_load_dwordx4 v[176:179], v147, s[40:41] offset:3072 sc1")
    setexec(-1)
    A("s_waitcnt vmcnt(0)")
    check_valid([f"v{164+j}" for j in range(16)], "v180", "L_pc", "L_pc_done")
    A("L_pc_done:")
    for j in range(4): A(f"v_add_f32 v{164+j}, v{164+j}, v{168+j}"); A(f"v_add_f32 v{172+j}, v{172+j}, v{176+j}")
    for j in range(4): A(f"v_add_f32 v{164+j}, v{164+j}, v{172+j}")
    A("v_permlane32_swap_b32 v164, v166"); A("v_permlane32_swap_b32 v165, v167")
    A("v_add_f32 v164, v164, v166"); A("v_add_f32 v165, v165, v167")
    A("v_permlane16_swap_b32 v164, v165"); A("v_add_f32 v164, v164, v165")
    dppop("v_add_f32", "v164", "v164", "v164", "row_ror:8"); dppop("v_add_f32", "v164", "v164", "v164", "row_ror:4")
    A("s_waitcnt lgkmcnt(0)")
    rnd("v164"); A("v_mul_f32 v164, v194, v164"); rnd("v164"); A("v_add_f32 v164, v193, v164")
    A("v_cvt_pk_bf16_f32 v164, v164, v164")
    setexec(M4)
    A("global_store_short v148, v164, s[36:37]")
    A("L_exit:")
    if stamps:
        setexec(-1)
        A("s_cmp_eq_u32 s3, 7"); A("s_cbranch_scc0 L_st0")
        A("s_memrealtime s[94:95]")
        A("L_st0:")
        A("s_waitcnt lgkmcnt(0)")
        A("s_cmp_eq_u32 s3, 0"); A("s_cbranch_scc1 L_st1"); A("s_cmp_eq_u32 s3, 7"); A("s_cbranch_scc0 L_end")
        A("L_st1:")
        A("s_lshl_b32 s12, s2, 7"); A("s_lshr_b32 s13, s3, 2"); A("s_lshl_b32 s13, s13, 6"); A("s_add_u32 s12, s12, s13")
        A(f"s_add_u32 s12, s12, {STAMP_OFF}"); A("v_mov_b32 v1, s12")
        for k in range(8):
            A(f"v_mov_b32 v2, s{80+2*k}"); A(f"v_mov_b32 v3, s{81+2*k}")
            A(f"global_store_dwordx2 v1, v[2:3], s[40:41] offset:{k*8}")
    A("L_end:")
    A("s_endpgm")
    A("L_code_end:")
    body = A.finish()
    body = body.replace("v_lshlrev_b32 v141, 2, v152\nv_add_u32 v141, s12, v141", "v_lshlrev_b32 v141, 2, v152\nv_add_u32 v141, s12, v141\nv_add_u32 v141, 0x20000, v141")
    o = HDR + f"; @launch grid=(256,1,1) block=(512,1,1) lds={LDS_SIZE}\n"
    o += '.amdgcn_target "amdgcn-amd-amdhsa--gfx950"\n.text\n'
    o += f".globl {NAME}\n.p2align 8\n.type {NAME},@function\n"
    o += body
    o += '.section .rodata,"a"\n.p2align 6\n'
    o += f".amdhsa_kernel {NAME}\n  .amdhsa_next_free_vgpr 256\n  .amdhsa_next_free_sgpr 100\n  .amdhsa_accum_offset 256\n"
    o += "  .amdhsa_group_segment_fixed_size 0\n  .amdhsa_kernarg_size 104\n  .amdhsa_user_sgpr_count 2\n"
    o += "  .amdhsa_user_sgpr_kernarg_segment_ptr 1\n  .amdhsa_system_sgpr_workgroup_id_x 1\n"
    o += "  .amdhsa_float_denorm_mode_32 3\n.end_amdhsa_kernel\n"
    return o


if __name__ == "__main__":
    import json
    out = sys.argv[1]
    kw = {}
    for a in sys.argv[2:]:
        k, v = a.split("=")
        try: v = json.loads(v)
        except Exception: pass
        kw[k] = v
    open(out, "w").write(gen(**kw))
```
